```python
import torch

def _softmax(x, axis=-1):
    return torch.softmax(x, dim=axis)
def _gelu(x):
    return torch.nn.functional.gelu(x, approximate="tanh")
def _silu(x):
    return torch.nn.functional.silu(x)
def _sigmoid(x):
    return torch.sigmoid(x)
def _layernorm(x, axis=-1, eps=1e-5):
    m = x.mean(dim=axis, keepdim=True)
    v = x.var(dim=axis, keepdim=True, unbiased=False)
    return (x - m) / torch.sqrt(v + eps)
def _scatter_add(tgt, idx, src, axis=0):
    return tgt.clone().index_add_(axis, idx, src)
def _segment_sum(src, seg, n):
    out = torch.zeros((n,) + src.shape[1:], dtype=src.dtype)
    return out.index_add_(0, seg, src)
def _pad(x, pw):
    flat = tuple(v for pair in reversed(pw) for v in pair)
    return torch.nn.functional.pad(x, flat)

kernel_name = 'gated_mix__ssm_conv_s4d__geglu_ffn__prompt'

def setup_inputs():

    _w = (lambda a: (lambda t: t.to(torch.bfloat16) if t.is_floating_point() else t)(torch.as_tensor(a)))
    def _A_setup():
        Bsz, L, D, N = 1, 2048, 512, 128
        return {
            "u": _w((lambda *s: torch.randn(*s, dtype=torch.bfloat16) * 0.05)(Bsz, L, D)),
            "log_A_real": _w((lambda *s: torch.randn(*s, dtype=torch.bfloat16) * 6.4)(D, N) * 0.5),
            "A_imag": _w((lambda *s: torch.randn(*s, dtype=torch.bfloat16) * 0.05)(D, N) * 3.14),
            "C_real": _w((lambda *s: torch.randn(*s, dtype=torch.bfloat16) * 0.05)(D, N) / N ** 0.5),
            "C_imag": _w((lambda *s: torch.randn(*s, dtype=torch.bfloat16) * 0.05)(D, N) / N ** 0.5),
            "log_dt": _w((lambda *s: torch.randn(*s, dtype=torch.bfloat16) * 0.05)(D) * 0.5 - 4.0),
            "D_skip": _w((lambda *s: torch.randn(*s, dtype=torch.bfloat16) * 0.05)(D)),
        }
    _A_in = _A_setup()

    def _B_setup():
        B, S, D, F = 1, 2048, 512, 1376
        return {
            "x": _w((lambda *s: torch.randn(*s, dtype=torch.bfloat16) * 0.05)(B, S, D)),
            "w_gate": _w((lambda *s: torch.randn(*s, dtype=torch.bfloat16) * 0.05)(D, F)),
            "w_up": _w((lambda *s: torch.randn(*s, dtype=torch.bfloat16) * 0.05)(D, F)),
            "w_down": _w((lambda *s: torch.randn(*s, dtype=torch.bfloat16) * 0.05)(F, D)),
        }
    _B_in = _B_setup()

    return {
        "A_u": _A_in["u"],
        "A_log_A_real": _A_in["log_A_real"],
        "A_A_imag": _A_in["A_imag"],
        "A_C_real": _A_in["C_real"],
        "A_C_imag": _A_in["C_imag"],
        "A_log_dt": _A_in["log_dt"],
        "A_D_skip": _A_in["D_skip"],
        "B_x": _B_in["x"],
        "B_w_gate": _B_in["w_gate"],
        "B_w_up": _B_in["w_up"],
        "B_w_down": _B_in["w_down"],
        "gate_w": _w((lambda *s: torch.randn(*s, dtype=torch.bfloat16) * 0.05)(512) * 16.0),
    }

def reference(A_u, A_log_A_real, A_A_imag, A_C_real, A_C_imag, A_log_dt, A_D_skip, B_x, B_w_gate, B_w_up, B_w_down, gate_w):
    def _A_ref(u, log_A_real, A_imag, C_real, C_imag, log_dt, D_skip):
        L = u.shape[1]
        dt = torch.exp(log_dt)
        A = -torch.exp(log_A_real) + 1j * A_imag
        C = (C_real + 1j * C_imag) * dt[:, None]
        pos = (lambda x, dt: x.to(dt))(torch.arange(L), log_dt.dtype)
        P = torch.exp((A * dt[:, None])[:, :, None] * pos[None, None, :])
        K = 2.0 * torch.einsum("dn,dnl->dl", C, P).real
        L2 = 2 * L
        u_t = (lambda x, *d: x.permute(*d))(u, 0, 2, 1)
        Kf = (lambda x, *a, **k: torch.fft.rfft(x.float(), *a, **k))(K, L2)
        Uf = (lambda x, *a, **k: torch.fft.rfft(x.float(), *a, **k))(u_t, L2)
        y = (lambda x, *a, **k: torch.fft.irfft(x, *a, **k).to(torch.bfloat16))(Uf * Kf[None, :, :], L2)[:, :, :L]
        y = (lambda x, *d: x.permute(*d))(y, 0, 2, 1)
        return y + u * D_skip[None, None, :]

    def _B_ref(x, w_gate, w_up, w_down):
        return (_gelu(x @ w_gate) * (x @ w_up)) @ w_down

    x = A_u
    g = _sigmoid((x * gate_w).sum(-1, keepdims=True))
    a = _A_ref(x, A_log_A_real, A_A_imag, A_C_real, A_C_imag, A_log_dt, A_D_skip)
    b = _B_ref(x, B_w_gate, B_w_up, B_w_down)
    return g * a + (1 - g) * b
```

```python
import re

TRANS = {"v_exp_f32", "v_log_f32", "v_rcp_f32", "v_rsq_f32", "v_sqrt_f32", "v_sin_f32", "v_cos_f32",
         "v_rcp_iflag_f32"}

MFMA = {
    "v_mfma_f32_32x32x16_bf16": ("xdl", 8),
    "v_mfma_f32_16x16x32_bf16": ("xdl", 4),
    "v_mfma_f32_16x16x4_f32": ("sgemm", 8),
    "v_mfma_f32_32x32x2_f32": ("sgemm", 16),
}
XDL_D2OTHER = {2: 5, 4: 8, 8: 12, 16: 20}
SG_D2OTHER = {2: 4, 4: 6, 8: 10, 16: 18}
XDL_CWAR = {2: 1, 4: 3, 8: 7, 16: 15}

_reg_re = re.compile(r"^(-|abs\(|\|)?\s*([vsa])(\d+)\)?\|?$")
_rng_re = re.compile(r"^(-)?([vsa])\[(\d+):(\d+)\]$")


def regs_of(op):
    op = op.strip()
    m = _rng_re.match(op)
    if m:
        return [(m.group(2), i) for i in range(int(m.group(3)), int(m.group(4)) + 1)]
    m = _reg_re.match(op)
    if m:
        return [(m.group(2), int(m.group(3)))]
    if op in ("vcc", "exec", "m0", "vcc_lo", "vcc_hi", "exec_lo", "exec_hi"):
        return [("x", op[:4] if op.startswith("exec") else op[:3])]
    return []


class Asm:
    def __init__(self):
        self.lines = []
        self.count = 0
        self.reset()
        self.maxv = 0
        self.maxs = 0

    def reset(self):
        self.valu_w = {}
        self.trans_w = {}
        self.mfma_w = {}
        self.mfma_d = {}
        self.mfma_cr = {}
        self.sg_w = {}
        self.st_d = {}
        self.m0_w = None

    def raw(self, text):
        self.lines.append(text)

    def comment(self, text):
        self.lines.append("    ; " + text)

    def label(self, name):
        self.lines.append(name + ":")

    def _pad(self, n):
        while n > 0:
            k = min(n, 16)
            self.lines.append("    s_nop %d" % (k - 1))
            self.count += k
            n -= k

    def flush(self):
        need = 0
        c = self.count
        for d, n in ((self.valu_w, 2), (self.trans_w, 1), (self.st_d, 2)):
            for p in d.values():
                need = max(need, n - (c - p - 1))
        for p in self.sg_w.values():
            need = max(need, 5 - (c - p - 1))
        for p, n in self.mfma_w.values():
            need = max(need, n - (c - p - 1))
        for p, n in self.mfma_cr.values():
            need = max(need, n - (c - p - 1))
        if self.m0_w is not None:
            need = max(need, 1 - (c - self.m0_w - 1))
        if need > 0:
            self._pad(need)
        self.reset()

    def __call__(self, text):
        for t in text.strip().split("\n"):
            t = t.strip()
            if t:
                self.emit(t)

    def emit(self, text):
        body = text.split(";")[0].strip()
        parts = body.split(None, 1)
        op = parts[0]
        rest = parts[1] if len(parts) > 1 else ""
        ops = [o.strip() for o in re.split(r",(?![^\[]*\])", rest)] if rest else []
        mods = ""
        if ops:
            sp = ops[-1].split(None, 1)
            if len(sp) > 1:
                ops[-1] = sp[0]
                mods = sp[1]
        for o in ops:
            for k, i in regs_of(o):
                if k == "v":
                    self.maxv = max(self.maxv, i)
                if k == "s":
                    self.maxs = max(self.maxs, i)

        if op == "s_nop":
            self.lines.append("    " + text)
            self.count += int(ops[0], 0) + 1
            return
        if op.startswith("s_branch") or op.startswith("s_cbranch") or op == "s_endpgm":
            self.flush()
            self.lines.append("    " + text)
            self.count += 1
            return

        dst, src = [], []
        kind = "salu"
        dpp = ("dpp" in op) or ("row_" in mods) or ("quad_perm" in mods)
        if op in MFMA:
            kind = "mfma"
            dst = regs_of(ops[0])
            srcA, srcB, srcC = regs_of(ops[1]), regs_of(ops[2]), regs_of(ops[3])
            src = srcA + srcB + srcC
        elif op.startswith("v_"):
            kind = "valu"
            if op.startswith("v_permlane"):
                dst = regs_of(ops[0]) + regs_of(ops[1])
                src = list(dst)
            else:
                dst = regs_of(ops[0])
                k0 = 1
                if "_co_" in op and len(ops) > 1:
                    dst += regs_of(ops[1])
                    k0 = 2
                for o in ops[k0:]:
                    src += regs_of(o)
                if op.startswith("v_fmac") or op.startswith("v_pk_fmac") or dpp:
                    src += regs_of(ops[0])
        elif op.startswith("ds_"):
            kind = "ds"
            if op.startswith("ds_write"):
                for o in ops:
                    src += regs_of(o)
            else:
                dst = regs_of(ops[0])
                for o in ops[1:]:
                    src += regs_of(o)
        elif op.startswith("buffer_") or op.startswith("global_"):
            kind = "vmem"
            lds = "lds" in mods.split() or "_lds_" in op
            if "_load" in op and not lds:
                dst = regs_of(ops[0])
                for o in ops[1:]:
                    src += regs_of(o)
            else:
                for o in ops:
                    src += regs_of(o)
        else:
            if op.startswith("s_") and ops and not op.startswith("s_cmp") and not op.startswith("s_waitcnt") \
                    and op not in ("s_barrier", "s_setprio", "s_sleep"):
                dst = regs_of(ops[0])
                for o in ops[1:]:
                    src += regs_of(o)

        c = self.count
        need = 0

        def req(pos, n):
            nonlocal need
            need = max(need, n - (c - pos - 1))

        vsrc = [r for r in src if r[0] in "va"]
        vdst = [r for r in dst if r[0] in "va"]
        ssrc = [r for r in src if r[0] in "sx"]

        if kind == "mfma":
            cls, passes = MFMA[op]
            for r in vsrc:
                if r in self.valu_w:
                    req(self.valu_w[r], 2)
            for r in srcA + srcB:
                if r in self.mfma_w:
                    req(*self.mfma_w[r])
            crange = (srcC[0], srcC[-1])
            for r in srcC:
                if r in self.mfma_d:
                    p, rng, pcls, pp = self.mfma_d[r]
                    if rng == crange and pcls == cls and pp == passes:
                        if pp == 2:
                            req(p, 2)
                    else:
                        req(p, {2: 4, 4: 6, 8: 10, 16: 18}[pp])
            for r in vdst:
                if r not in srcC and r in self.mfma_w:
                    req(*self.mfma_w[r])
        elif kind == "valu":
            for r in vsrc:
                if r in self.trans_w and op not in TRANS:
                    req(self.trans_w[r], 1)
                if r in self.mfma_w:
                    req(*self.mfma_w[r])
                if (dpp or op.startswith("v_permlane")) and r in self.valu_w:
                    req(self.valu_w[r], 2)
                if op.startswith("v_readlane") or op.startswith("v_readfirstlane"):
                    if r in self.valu_w:
                        req(self.valu_w[r], 1)
            for r in vdst:
                if r in self.mfma_w:
                    req(*self.mfma_w[r])
                if r in self.mfma_cr:
                    req(*self.mfma_cr[r])
                if r in self.st_d:
                    req(self.st_d[r], 2)
            for r in ssrc:
                if r in self.sg_w:
                    req(self.sg_w[r], 4 if "lane" in op else 2)
            if op.startswith("v_cndmask") and len(ops) == 3 and ("x", "vcc") in self.sg_w:
                req(self.sg_w[("x", "vcc")], 2)
        elif kind in ("ds", "vmem"):
            for r in vsrc:
                if r in self.mfma_w:
                    req(*self.mfma_w[r])
            for r in vdst:
                if r in self.mfma_w:
                    req(*self.mfma_w[r])
                if r in self.mfma_cr:
                    req(*self.mfma_cr[r])
                if r in self.st_d:
                    req(self.st_d[r], 1)
            if kind == "vmem":
                for r in ssrc:
                    if r in self.sg_w:
                        req(self.sg_w[r], 5)
                if ("lds" in mods.split() or "_lds_" in op) and self.m0_w is not None:
                    req(self.m0_w, 1)
        else:
            for r in ssrc:
                if r in self.sg_w:
                    req(self.sg_w[r], 2)

        if need > 0:
            self._pad(need)
        self.lines.append("    " + text)
        pos = self.count
        self.count += 1

        if kind == "mfma":
            cls, passes = MFMA[op]
            n = (XDL_D2OTHER if cls == "xdl" else SG_D2OTHER)[passes]
            drange = (dst[0], dst[-1])
            for r in dst:
                self.mfma_w[r] = (pos, n)
                self.mfma_d[r] = (pos, drange, cls, passes)
                self.valu_w.pop(r, None)
                self.trans_w.pop(r, None)
            if cls == "xdl":
                for r in srcC:
                    self.mfma_cr[r] = (pos, XDL_CWAR[passes])
        elif kind == "valu":
            for r in dst:
                if r[0] in "va":
                    self.valu_w[r] = pos
                    if op in TRANS:
                        self.trans_w[r] = pos
                    else:
                        self.trans_w.pop(r, None)
                    self.mfma_w.pop(r, None)
                    self.mfma_d.pop(r, None)
                else:
                    self.sg_w[r] = pos
        elif kind in ("ds", "vmem"):
            for r in vdst:
                self.valu_w.pop(r, None)
                self.trans_w.pop(r, None)
                self.mfma_w.pop(r, None)
                self.mfma_d.pop(r, None)
            if kind == "vmem" and "store" in op and ("x3" in op or "x4" in op):
                data = regs_of(ops[0]) if op.startswith("buffer_") else regs_of(ops[1])
                for r in data:
                    self.st_d[r] = pos
        else:
            for r in dst:
                if r == ("x", "m0"):
                    self.m0_w = pos
                self.sg_w.pop(r, None)

    def text(self):
        return "\n".join(self.lines) + "\n"
```

```python
import struct
import sys
import os

sys.path.insert(0, os.path.dirname(os.path.abspath(__file__)))
from asmlib import Asm

NAME = "gated_mix__ssm_conv_s4d__geglu_ffn__prompt"


def f2h(x):
    return "0x%08x" % struct.unpack("<I", struct.pack("<f", x))[0]


L2E = 0x3FB8AA3B
L2E_LO = 0x32A57060
LN2 = 0x3F317218
INV2PI = 0x3E22F983

WS_H = 0
WS_AT = 0x600000
WS_G = 0x800000
WS_DBG = 0x900000

N_SSM = 256
N_G1 = 352
N_GATE = 32
N_K1 = N_SSM + N_G1 + N_GATE

U_CH = 8576
U_C1 = 4288
KT = 17152
KT_ARR = 7680
KD = 47872
PR = 56064
LDS_K1 = 60160

S_U, S_WS, S_A, S_B, S_C, S_D = 48, 52, 56, 60, 64, 68


def srd(a, dst, base, nbytes):
    a(f"s_mov_b32 s{dst}, s{base}")
    a(f"s_and_b32 s{dst+1}, s{base+1}, 0xffff")
    a(f"s_mov_b32 s{dst+2}, {nbytes}")
    a(f"s_mov_b32 s{dst+3}, 0x00020000")


def load_kernargs(a):
    a("s_load_dwordx16 s[16:31], s[0:1], 0")
    a("s_load_dwordx8 s[32:39], s[0:1], 64")
    a("s_load_dwordx4 s[40:43], s[0:1], 96")
    a("s_load_dwordx2 s[44:45], s[0:1], 112")


def exp_precise(a, dst, x, t0, t1):
    a(f"v_mul_f32 v{t0}, {hex(L2E)}, v{x}")
    a(f"s_mov_b32 s10, {hex(L2E)}")
    a(f"v_fma_f32 v{t1}, v{x}, s10, -v{t0}")
    a(f"v_fmac_f32 v{t1}, {hex(L2E_LO)}, v{x}")
    a(f"v_exp_f32 v{dst}, v{t0}")
    a(f"v_mul_f32 v{t1}, {hex(LN2)}, v{t1}")
    a(f"v_fmac_f32 v{dst}, v{dst}, v{t1}")


def bf16r(a, reg):
    a(f"v_cvt_pk_bf16_f32 v{reg}, v{reg}, v{reg}")
    a(f"v_lshlrev_b32 v{reg}, 16, v{reg}")


def gen_ssm(a):
    a.comment("---------------- SSM workgroup: channels d0=2*wg, d0+1")
    a("s_lshl_b32 s3, s2, 1")
    a("s_lshl_b32 s4, s2, 2")
    a("s_waitcnt lgkmcnt(0)")
    a("s_load_dword s5, s[26:27], s4")
    a("s_load_dword s6, s[28:29], s4")
    srd(a, S_U, 16, 2097152)
    srd(a, S_WS, 44, 0x10000000)
    srd(a, S_A, 18, 131072)
    srd(a, S_B, 20, 131072)
    srd(a, S_C, 22, 131072)
    srd(a, S_D, 24, 131072)
    a("v_and_b32 v1, 63, v0")
    a("v_lshrrev_b32 v2, 6, v0")
    a("v_readfirstlane_b32 s7, v2")
    a("v_lshlrev_b32 v2, 13, v0")
    a("v_add_u32 v2, s4, v2")
    a("v_add_u32 v3, 0x1000, v2")
    a("v_add_u32 v4, 0x2000, v2")
    for i in range(4):
        a(f"buffer_load_dword v{10+i}, v2, s[{S_U}:{S_U+3}], 0 offen offset:{1024*i}")
    for i in range(4):
        a(f"buffer_load_dword v{14+i}, v3, s[{S_U}:{S_U+3}], 0 offen offset:{1024*i}")
    a(f"buffer_load_dword v18, v4, s[{S_U}:{S_U+3}], 0 offen")
    a("s_lshl_b32 s8, s2, 9")
    a("v_lshlrev_b32 v5, 1, v0")
    a("v_add_u32 v5, s8, v5")
    for k, s in enumerate((S_A, S_B, S_C, S_D)):
        a(f"buffer_load_ushort v{20+k}, v5, s[{s}:{s+3}], 0 offen")
    a("s_waitcnt lgkmcnt(0)")
    a("s_lshl_b32 s11, s5, 16")
    a("s_and_b32 s12, s5, 0xffff0000")
    a("s_lshl_b32 s13, s6, 16")
    a("s_and_b32 s14, s6, 0xffff0000")
    a("s_cmp_ge_u32 s7, 2")
    a("s_cselect_b32 s11, s12, s11")
    a("s_cselect_b32 s13, s14, s13")
    a("s_lshr_b32 s15, s7, 1")
    a("v_mov_b32 v24, s11")
    exp_precise(a, 25, 24, 26, 27)
    bf16r(a, 25)
    a("v_mov_b32 v28, 0")
    a("v_mov_b32 v29, 0")
    a("v_mov_b32 v30, 0")
    a("v_mov_b32 v31, 0")
    a("v_lshlrev_b32 v6, 4, v0")
    a("v_cmp_gt_u32 vcc, 160, v0")
    a("s_and_saveexec_b64 s[72:73], vcc")
    a("s_cbranch_execz L_ssm_nz")
    for arr in range(4):
        a(f"ds_write_b128 v6, v[28:31] offset:{KT + arr*KT_ARR}")
    a.label("L_ssm_nz")
    a("s_mov_b64 exec, s[72:73]")
    a("s_waitcnt vmcnt(0)")
    for k in range(4):
        a(f"v_lshlrev_b32 v{20+k}, 16, v{20+k}")
    exp_precise(a, 32, 20, 26, 27)
    bf16r(a, 32)
    a("v_mul_f32 v32, v32, v25")
    a(f"v_mul_f32 v32, {hex(L2E ^ 0x80000000)}, v32")
    a("v_mul_f32 v33, v21, v25")
    a(f"v_mul_f32 v33, {hex(INV2PI)}, v33")
    a("v_mul_f32 v34, v22, v25")
    a("v_mul_f32 v35, v23, v25")
    a(f"ds_write_b128 v6, v[32:35] offset:{PR}")
    a("s_mov_b32 s8, 0x05040100")
    a("s_mov_b32 s9, 0x07060302")
    for ch, sel in ((0, "s8"), (1, "s9")):
        for i in range(4):
            a(f"v_perm_b32 v{36+i}, v{11+2*i}, v{10+2*i}, {sel}")
        for i in range(4):
            a(f"v_perm_b32 v{40+i}, v{12+2*i}, v{11+2*i}, {sel}")
        a(f"ds_write_b128 v6, v[36:39] offset:{ch*U_CH + 64}")
        a(f"ds_write_b128 v6, v[40:43] offset:{ch*U_CH + U_C1 + 64}")
    a("v_cmp_eq_u32 vcc, 0, v0")
    a("s_and_saveexec_b64 s[72:73], vcc")
    a("s_cbranch_execz L_ssm_np")
    for ch in range(2):
        for c in range(4):
            a(f"ds_write_b128 v6, v[28:31] offset:{ch*U_CH + 16*c}")
        for c in range(3):
            a(f"ds_write_b128 v6, v[28:31] offset:{ch*U_CH + U_C1 + 16*c}")
    a("v_mov_b32 v44, 0")
    a("v_mov_b32 v45, 0")
    a("v_mov_b32 v46, 0")
    a("v_lshlrev_b32 v47, 16, v10")
    a(f"ds_write_b128 v6, v[44:47] offset:{U_C1 + 48}")
    a("v_and_b32 v51, 0xffff0000, v10")
    a("v_mov_b32 v48, 0")
    a("v_mov_b32 v49, 0")
    a("v_mov_b32 v50, 0")
    a(f"ds_write_b128 v6, v[48:51] offset:{U_CH + U_C1 + 48}")
    a.label("L_ssm_np")
    a("s_mov_b64 exec, s[72:73]")
    a("s_waitcnt lgkmcnt(0)")
    a("s_barrier")

    a("s_and_b32 s16, s7, 1")
    a("v_and_b32 v2, 15, v1")
    a("v_lshrrev_b32 v3, 4, v1")
    a("s_lshl_b32 s17, s16, 4")
    a("v_mov_b32 v4, s17")
    a("v_cmp_eq_u32 vcc, 0, v2")
    a("v_cndmask_b32 v4, v2, v4, vcc")
    a("s_lshl_b32 s18, s16, 1")
    a("s_add_u32 s19, s18, 4")
    a("v_lshlrev_b32 v4, s19, v4")
    a("v_lshlrev_b32 v5, s18, v2")
    a("v_cvt_f32_u32 v4, v4")
    a("v_cvt_f32_u32 v5, v5")
    a("s_lshl_b32 s19, s15, 11")
    a("v_lshlrev_b32 v7, 9, v3")
    a("v_add_u32 v7, s19, v7")
    for r in range(8):
        a(f"v_mov_b32 v{40+r}, 0")
    P0, P1 = 8, 12
    a(f"ds_read_b128 v[{P0}:{P0+3}], v7 offset:{PR}")
    for t in range(32):
        P = P0 if t % 2 == 0 else P1
        Pn = P1 if t % 2 == 0 else P0
        if t < 31:
            a(f"ds_read_b128 v[{Pn}:{Pn+3}], v7 offset:{PR + 16*(t+1)}")
            a("s_waitcnt lgkmcnt(1)")
        else:
            a("s_waitcnt lgkmcnt(0)")
        lr, li, cr, ci = P, P + 1, P + 2, P + 3
        a(f"""
        v_mul_f32 v16, v{lr}, v4
        v_mul_f32 v17, v{li}, v4
        v_mul_f32 v18, v{lr}, v5
        v_mul_f32 v19, v{li}, v5
        v_exp_f32 v16, v16
        v_fract_f32 v17, v17
        v_exp_f32 v18, v18
        v_fract_f32 v19, v19
        v_cos_f32 v20, v17
        v_sin_f32 v21, v17
        v_cos_f32 v22, v19
        v_sin_f32 v23, v19
        v_mul_f32 v20, v16, v20
        v_mul_f32 v21, v16, v21
        v_mul_f32 v22, v18, v22
        v_mul_f32 v23, v18, v23
        v_mul_f32 v24, v{cr}, v20
        v_mul_f32 v25, v{cr}, v21
        v_mul_f32 v28, v20, v20
        v_mul_f32 v29, v20, v21
        v_fma_f32 v24, -v{ci}, v21, v24
        v_fma_f32 v25, v{ci}, v20, v25
        v_fma_f32 v28, -v21, v21, v28
        v_add_f32 v29, v29, v29
        v_sub_f32 v25, 0, v25
        v_mul_f32 v30, v22, v22
        v_mul_f32 v31, v22, v23
        v_mfma_f32_16x16x4_f32 v[40:43], v24, v22, v[40:43]
        v_fma_f32 v30, -v23, v23, v30
        v_add_f32 v31, v31, v31
        v_mfma_f32_16x16x4_f32 v[40:43], v25, v23, v[40:43]
        v_mul_f32 v26, v{cr}, v28
        v_mul_f32 v27, v{cr}, v29
        v_fma_f32 v26, -v{ci}, v29, v26
        v_fma_f32 v27, v{ci}, v28, v27
        v_sub_f32 v27, 0, v27
        v_mfma_f32_16x16x4_f32 v[44:47], v26, v30, v[44:47]
        v_mfma_f32_16x16x4_f32 v[44:47], v27, v31, v[44:47]
        """)
    a("s_lshl_b32 s19, s15, 12")
    a("s_lshl_b32 s17, s16, 11")
    a("s_add_u32 s19, s19, s17")
    a("v_lshlrev_b32 v7, 8, v3")
    a("v_lshl_add_u32 v7, v2, 2, v7")
    a("v_add_u32 v7, s19, v7")
    for sg in range(2):
        for r in range(4):
            a(f"ds_write_b32 v7, v{40+4*sg+r} offset:{KD + 1024*sg + 64*r}")
    a("s_waitcnt lgkmcnt(0)")
    a("s_barrier")

    a("s_lshl_b32 s17, s16, 6")
    a("v_add_u32 v2, s17, v1")
    a("s_lshl_b32 s19, s15, 12")
    a("s_mul_i32 s18, s15, %d" % (2 * KT_ARR))
    a("v_mov_b32 v9, 0x300")
    for cc in range(2):
        a(f"v_add_u32 v3, {128*cc}, v2")
        a("v_lshlrev_b32 v4, 3, v3")
        for i in range(8):
            a(f"v_add_u32 v5, {7-i}, v4")
            a("v_cvt_f32_u32 v5, v5")
            a("v_bfe_u32 v6, v5, 16, 1")
            a("v_add3_u32 v5, v5, v6, s74")
            a("v_and_b32 v5, 0xffff0000, v5")
            a("v_lshrrev_b32 v6, 23, v5")
            a("v_subrev_u32 v6, 134, v6")
            a("v_max_i32 v6, 0, v6")
            a("v_cvt_u32_f32 v5, v5")
            a("v_lshrrev_b32 v5, v6, v5")
            a("v_lshl_add_u32 v5, v6, 8, v5")
            a("v_cmp_eq_u32 vcc, 4, v6")
            a("v_cndmask_b32 v5, v5, v9, vcc")
            a("v_lshlrev_b32 v5, 2, v5")
            a("v_add_u32 v5, s19, v5")
            a(f"ds_read_b32 v{16+i}, v5 offset:{KD}")
        a("s_waitcnt lgkmcnt(0)")
        for i in range(8):
            a(f"v_add_f32 v{16+i}, v{16+i}, v{16+i}")
        for p in range(4):
            a(f"v_cvt_pk_bf16_f32 v{24+p}, v{16+2*p}, v{17+2*p}")
        for p in range(4):
            a(f"v_lshlrev_b32 v32, 16, v{24+p}")
            a(f"v_and_b32 v33, 0xffff0000, v{24+p}")
            a(f"v_sub_f32 v32, v{16+2*p}, v32")
            a(f"v_sub_f32 v33, v{17+2*p}, v33")
            a(f"v_cvt_pk_bf16_f32 v{28+p}, v32, v33")
        a("v_lshrrev_b32 v5, 2, v3")
        a("v_mul_u32_u24 v5, 80, v5")
        a("v_and_b32 v6, 3, v3")
        a("v_lshl_add_u32 v5, v6, 4, v5")
        a("v_add_u32 v5, s18, v5")
        a(f"ds_write_b128 v5, v[24:27] offset:{KT + 2560}")
        a(f"ds_write_b128 v5, v[28:31] offset:{KT + KT_ARR + 2560}")
    a("s_waitcnt lgkmcnt(0)")
    a("s_barrier")

    a("v_and_b32 v2, 31, v1")
    a("v_lshrrev_b32 v3, 5, v1")
    a("v_and_b32 v4, 1, v2")
    a("v_cmp_eq_u32 vcc, 1, v4")
    a(f"v_mov_b32 v4, {U_C1+48}")
    a("v_cndmask_b32 v4, v4, 50, vcc")
    a("v_lshl_add_u32 v4, v2, 1, v4")
    a("v_lshlrev_b32 v5, 4, v3")
    a("v_sub_u32 v4, v4, v5")
    a("s_mul_i32 s17, s15, %d" % U_CH)
    a("s_lshl_b32 s19, s16, 5")
    a("s_sub_u32 s17, s17, s19")
    a("v_add_u32 v4, s17, v4")
    a("v_add_u32 v5, 1024, v4")
    a("v_add_u32 v6, 2048, v4")
    a("v_add_u32 v7, 3072, v4")
    a("v_mul_u32_u24 v8, 80, v2")
    a("v_lshl_add_u32 v8, v3, 4, v8")
    a("s_lshl_b32 s19, s16, 5")
    a("s_add_u32 s19, s19, s18")
    a(f"s_add_u32 s19, s19, {KT + 80}")
    a("v_add_u32 v8, s19, v8")
    ACC0, ACC1 = 64, 80
    for r in range(32):
        a(f"v_mov_b32 v{64+r}, 0")
    FR = [16, 40]

    def issue(dp, F):
        ra = 4 if dp < 16 else 5
        rb = 6 if dp < 16 else 7
        o = 16 * (dp % 16)
        a(f"ds_read2_b32 v[{F}:{F+1}], v{ra} offset0:{o} offset1:{o+1}")
        a(f"ds_read2_b32 v[{F+2}:{F+3}], v{ra} offset0:{o+2} offset1:{o+3}")
        a(f"ds_read2_b32 v[{F+4}:{F+5}], v{rb} offset0:{o} offset1:{o+1}")
        a(f"ds_read2_b32 v[{F+6}:{F+7}], v{rb} offset0:{o+2} offset1:{o+3}")
        ob = 80 * (31 - dp)
        a(f"ds_read_b128 v[{F+8}:{F+11}], v8 offset:{ob}")
        a(f"ds_read_b128 v[{F+12}:{F+15}], v8 offset:{ob+2560}")
        a(f"ds_read_b128 v[{F+16}:{F+19}], v8 offset:{ob+KT_ARR}")
        a(f"ds_read_b128 v[{F+20}:{F+23}], v8 offset:{ob+KT_ARR+2560}")

    issue(0, FR[0])
    for dp in range(32):
        F = FR[dp % 2]
        if dp < 31:
            issue(dp + 1, FR[(dp + 1) % 2])
            a("s_waitcnt lgkmcnt(8)")
        else:
            a("s_waitcnt lgkmcnt(0)")
        A1, A2 = f"v[{F}:{F+3}]", f"v[{F+4}:{F+7}]"
        B0a, B1a, B0b, B1b = (f"v[{F+8+4*k}:{F+11+4*k}]" for k in range(4))
        c0, c1 = f"v[{ACC0}:{ACC0+15}]", f"v[{ACC1}:{ACC1+15}]"
        a(f"v_mfma_f32_32x32x16_bf16 {c1}, {A1}, {B1a}, {c1}")
        a(f"v_mfma_f32_32x32x16_bf16 {c0}, {A1}, {B0a}, {c0}")
        a(f"v_mfma_f32_32x32x16_bf16 {c1}, {A2}, {B0a}, {c1}")
        a(f"v_mfma_f32_32x32x16_bf16 {c0}, {A1}, {B0b}, {c0}")
        a(f"v_mfma_f32_32x32x16_bf16 {c1}, {A1}, {B1b}, {c1}")
        a(f"v_mfma_f32_32x32x16_bf16 {c1}, {A2}, {B0b}, {c1}")
    a("s_barrier")
    a("s_lshl_b32 s17, s7, 12")
    a("v_lshlrev_b32 v9, 4, v1")
    a("v_add_u32 v4, s17, v9")
    a("s_xor_b32 s19, s17, 0x1000")
    a("v_add_u32 v5, s19, v9")
    a("s_cmp_eq_u32 s16, 0")
    a("s_cbranch_scc0 L_ssm_h1w")
    for q in range(4):
        a(f"ds_write_b128 v4, v[{ACC1+4*q}:{ACC1+4*q+3}] offset:{KT + 1024*q}")
    a("s_branch L_ssm_wdone")
    a.label("L_ssm_h1w")
    for q in range(4):
        a(f"ds_write_b128 v4, v[{ACC0+4*q}:{ACC0+4*q+3}] offset:{KT + 1024*q}")
    for r in range(16):
        a(f"v_mov_b32 v{ACC0+r}, v{ACC1+r}")
    a.label("L_ssm_wdone")
    a("s_waitcnt lgkmcnt(0)")
    a("s_barrier")
    for q in range(4):
        a(f"ds_read_b128 v[{16+4*q}:{19+4*q}], v5 offset:{KT + 1024*q}")
    a("v_lshlrev_b32 v6, 6, v2")
    a("v_lshl_add_u32 v6, v3, 3, v6")
    a("s_lshl_b32 s19, s16, 11")
    a("s_mul_i32 s17, s15, %d" % U_CH)
    a("s_add_u32 s17, s17, s19")
    a("v_add_u32 v7, s17, v6")
    for q in range(4):
        a(f"ds_read_b64 v[{32+2*q}:{33+2*q}], v7 offset:{64 + 16*q}")
    a("s_add_u32 s17, s3, s15")
    a("s_lshl_b32 s17, s17, 12")
    a("s_add_u32 s17, s17, s19")
    a(f"s_add_u32 s17, s17, {WS_AT}")
    a("v_add_u32 v8, s17, v6")
    a("s_waitcnt lgkmcnt(0)")
    for r in range(16):
        a(f"v_add_f32 v{ACC0+r}, v{ACC0+r}, v{16+r}")
    for q in range(4):
        a(f"v_cvt_pk_bf16_f32 v40, v{ACC0+4*q}, v{ACC0+4*q+1}")
        a(f"v_cvt_pk_bf16_f32 v41, v{ACC0+4*q+2}, v{ACC0+4*q+3}")
        a("v_lshlrev_b32 v42, 16, v40")
        a("v_and_b32 v43, 0xffff0000, v40")
        a("v_lshlrev_b32 v44, 16, v41")
        a("v_and_b32 v45, 0xffff0000, v41")
        a(f"v_lshlrev_b32 v46, 16, v{32+2*q}")
        a(f"v_and_b32 v47, 0xffff0000, v{32+2*q}")
        a(f"v_lshlrev_b32 v48, 16, v{33+2*q}")
        a(f"v_and_b32 v49, 0xffff0000, v{33+2*q}")
        for k in range(4):
            a(f"v_mul_f32 v{46+k}, s13, v{46+k}")
        a("v_cvt_pk_bf16_f32 v50, v46, v47")
        a("v_cvt_pk_bf16_f32 v51, v48, v49")
        a("v_lshlrev_b32 v46, 16, v50")
        a("v_and_b32 v47, 0xffff0000, v50")
        a("v_lshlrev_b32 v48, 16, v51")
        a("v_and_b32 v49, 0xffff0000, v51")
        for k in range(4):
            a(f"v_add_f32 v{42+k}, v{42+k}, v{46+k}")
        a(f"v_cvt_pk_bf16_f32 v{52+2*q}, v42, v43")
        a(f"v_cvt_pk_bf16_f32 v{53+2*q}, v44, v45")
        a(f"buffer_store_dwordx2 v[{52+2*q}:{53+2*q}], v8, s[{S_WS}:{S_WS+3}], 0 offen offset:{16*q}")
    a("s_endpgm")


G1_PITCH = 320
G1_BUF = 64 * G1_PITCH


def gen_gemm1(a):
    a.comment("---------------- GEMM1 workgroup")
    a(f"s_sub_u32 s3, s2, {N_SSM}")
    a("s_and_b32 s4, s3, 15")
    a("s_lshr_b32 s5, s3, 4")
    a("s_waitcnt lgkmcnt(0)")
    srd(a, S_U, 16, 2097152)
    srd(a, S_WS, 44, 0x10000000)
    srd(a, S_A, 32, 512 * 1376 * 2)
    srd(a, S_B, 34, 512 * 1376 * 2)
    a("v_and_b32 v1, 63, v0")
    a("v_lshrrev_b32 v2, 6, v0")
    a("v_readfirstlane_b32 s7, v2")
    a("v_and_b32 v2, 31, v1")
    a("v_lshrrev_b32 v3, 5, v1")
    a("s_lshl_b32 s8, s4, 7")
    a("s_lshl_b32 s9, s7, 5")
    a("s_add_u32 s8, s8, s9")
    a("v_add_u32 v4, s8, v2")
    a("v_lshlrev_b32 v4, 10, v4")
    a("v_lshl_add_u32 v4, v3, 6, v4")
    a("v_and_b32 v5, 7, v0")
    a("v_lshrrev_b32 v6, 3, v0")
    a("v_mul_u32_u24 v7, 2752, v6")
    a("v_lshl_add_u32 v7, v5, 4, v7")
    a("s_lshl_b32 s8, s5, 7")
    a("v_add_u32 v7, s8, v7")
    a(f"v_add_u32 v8, {32*2752}, v7")
    a(f"v_mul_u32_u24 v9, {G1_PITCH}, v6")
    a("v_lshl_add_u32 v9, v5, 4, v9")
    a("v_lshrrev_b32 v10, 4, v1")
    a("v_bfe_u32 v11, v1, 2, 2")
    a("v_and_b32 v12, 3, v1")
    a("v_lshrrev_b32 v13, 1, v10")
    a("v_lshl_add_u32 v13, v13, 5, v11")
    a(f"v_mul_u32_u24 v13, {G1_PITCH}, v13")
    a("v_and_b32 v10, 1, v10")
    a("v_lshl_add_u32 v13, v10, 5, v13")
    a("v_lshl_add_u32 v13, v12, 3, v13")
    ACC = 128
    for r in range(64):
        a(f"v_mov_b32 v{ACC+r}, 0")
    XF = [16, 32]
    WS_ = 48
    WF = [64, 80]

    def load_w(stage):
        so = stage * 64 * 2752
        a(f"s_mov_b32 s8, {so}")
        a(f"buffer_load_dwordx4 v[{WS_}:{WS_+3}], v7, s[{S_A}:{S_A+3}], s8 offen")
        a(f"buffer_load_dwordx4 v[{WS_+4}:{WS_+7}], v8, s[{S_A}:{S_A+3}], s8 offen")
        a(f"buffer_load_dwordx4 v[{WS_+8}:{WS_+11}], v7, s[{S_B}:{S_B+3}], s8 offen")
        a(f"buffer_load_dwordx4 v[{WS_+12}:{WS_+15}], v8, s[{S_B}:{S_B+3}], s8 offen")

    def store_w(buf):
        b = buf * G1_BUF
        a(f"ds_write_b128 v9, v[{WS_}:{WS_+3}] offset:{b}")
        a(f"ds_write_b128 v9, v[{WS_+4}:{WS_+7}] offset:{b + 32*G1_PITCH}")
        a(f"ds_write_b128 v9, v[{WS_+8}:{WS_+11}] offset:{b + 128}")
        a(f"ds_write_b128 v9, v[{WS_+12}:{WS_+15}] offset:{b + 32*G1_PITCH + 128}")

    def load_x(stage, X):
        for t in range(4):
            a(f"buffer_load_dwordx4 v[{X+4*t}:{X+4*t+3}], v4, s[{S_U}:{S_U+3}], 0 offen offset:{stage*128 + 16*t}")

    def read_frags(buf, t, F):
        for m in range(4):
            for j in range(2):
                off = buf * G1_BUF + 8 * t * G1_PITCH + 4 * j * G1_PITCH + (m >> 1) * 128 + (m & 1) * 64
                a(f"ds_read_b64_tr_b16 v[{F+4*m+2*j}:{F+4*m+2*j+1}], v13 offset:{off}")

    load_w(0)
    load_x(0, XF[0])
    a("s_waitcnt vmcnt(4)")
    store_w(0)
    load_w(1)
    a("s_waitcnt lgkmcnt(0)")
    a("s_barrier")
    for s in range(8):
        X = XF[s % 2]
        buf = s % 2
        if s < 7:
            load_x(s + 1, XF[(s + 1) % 2])
            a("s_waitcnt vmcnt(8)")
        else:
            a("s_waitcnt vmcnt(0)")
        read_frags(buf, 0, WF[0])
        for t in range(4):
            F = WF[t % 2]
            if t < 3:
                read_frags(buf, t + 1, WF[(t + 1) % 2])
                a("s_waitcnt lgkmcnt(8)")
            else:
                a("s_waitcnt lgkmcnt(0)")
            for m in range(4):
                c = f"v[{ACC+16*m}:{ACC+16*m+15}]"
                a(f"v_mfma_f32_32x32x16_bf16 {c}, v[{F+4*m}:{F+4*m+3}], v[{X+4*t}:{X+4*t+3}], {c}")
        if s < 7:
            a("s_waitcnt vmcnt(4)")
            store_w((s + 1) % 2)
            if s < 6:
                load_w(s + 2)
            a("s_waitcnt lgkmcnt(0)")
            a("s_barrier")

    K1 = -2.0 * 0.7978845608028654 * 1.4426950408889634
    a(f"s_mov_b32 s10, {f2h(K1)}")
    a("s_lshl_b32 s8, s4, 2")
    a("s_add_u32 s8, s8, s7")
    a("s_mul_i32 s8, s8, 172")
    a("s_lshl_b32 s9, s5, 3")
    a("s_add_u32 s8, s8, s9")
    a("s_lshl_b32 s8, s8, 9")
    a("v_lshlrev_b32 v5, 4, v2")
    a("v_lshl_add_u32 v5, v3, 3, v5")
    a("v_add_u32 v5, s8, v5")
    for nb in range(2):
        if nb == 1:
            a("s_cmp_eq_u32 s5, 21")
            a("s_cbranch_scc1 L_g1_done")
        G, U = ACC + 16 * nb, ACC + 32 + 16 * nb
        for q in range(4):
            for p in range(2):
                r = 4 * q + 2 * p
                a(f"v_cvt_pk_bf16_f32 v16, v{G+r}, v{G+r+1}")
                a(f"v_cvt_pk_bf16_f32 v17, v{U+r}, v{U+r+1}")
                a("v_lshlrev_b32 v18, 16, v16")
                a("v_and_b32 v19, 0xffff0000, v16")
                a("v_lshlrev_b32 v20, 16, v17")
                a("v_and_b32 v21, 0xffff0000, v17")
                a("v_mul_f32 v22, v18, v18")
                a("v_mul_f32 v23, v19, v19")
                a(f"v_mov_b32 v24, 1.0")
                a(f"v_mov_b32 v25, 1.0")
                a(f"v_fmac_f32 v24, {f2h(0.044715)}, v22")
                a(f"v_fmac_f32 v25, {f2h(0.044715)}, v23")
                a("v_mul_f32 v24, v24, v18")
                a("v_mul_f32 v25, v25, v19")
                a("v_mul_f32 v24, s10, v24")
                a("v_mul_f32 v25, s10, v25")
                a("v_exp_f32 v24, v24")
                a("v_exp_f32 v25, v25")
                a("v_add_f32 v24, 1.0, v24")
                a("v_add_f32 v25, 1.0, v25")
                a("v_rcp_f32 v24, v24")
                a("v_rcp_f32 v25, v25")
                a("v_mul_f32 v24, v24, v18")
                a("v_mul_f32 v25, v25, v19")
                a("v_cvt_pk_bf16_f32 v24, v24, v25")
                a("v_lshlrev_b32 v25, 16, v24")
                a("v_and_b32 v24, 0xffff0000, v24")
                a("v_mul_f32 v25, v25, v20")
                a("v_mul_f32 v24, v24, v21")
                a(f"v_cvt_pk_bf16_f32 v{28+2*(q%2)+p}, v25, v24")
            R = 28 + 2 * (q % 2)
            a(f"buffer_store_dwordx2 v[{R}:{R+1}], v5, s[{S_WS}:{S_WS+3}], 0 offen offset:{(4*nb+q)*512}")
    a.label("L_g1_done")
    a("s_endpgm")


def gen_gate(a):
    a.comment("---------------- gate workgroup")
    a(f"s_sub_u32 s3, s2, {N_SSM + N_G1}")
    a("s_waitcnt lgkmcnt(0)")
    srd(a, S_U, 16, 2097152)
    srd(a, S_WS, 44, 0x10000000)
    srd(a, S_A, 38, 1024)
    a("v_and_b32 v1, 63, v0")
    a("v_lshrrev_b32 v2, 6, v0")
    a("v_readfirstlane_b32 s7, v2")
    a("v_lshlrev_b32 v3, 4, v1")
    a(f"buffer_load_dwordx4 v[4:7], v3, s[{S_A}:{S_A+3}], 0 offen")
    a("s_lshl_b32 s8, s3, 6")
    a("s_lshl_b32 s9, s7, 4")
    a("s_add_u32 s8, s8, s9")
    a("s_lshl_b32 s9, s8, 10")
    a("v_add_u32 v2, s9, v3")
    a("v_add_u32 v8, 0x1000, v2")
    a("v_add_u32 v9, 0x2000, v2")
    a("v_add_u32 v10, 0x3000, v2")
    for i in range(16):
        base = (2, 8, 9, 10)[i // 4]
        a(f"buffer_load_dwordx4 v[{64+4*i}:{67+4*i}], v{base}, s[{S_U}:{S_U+3}], 0 offen offset:{1024*(i%4)}")
    a("s_waitcnt vmcnt(16)")
    for k in range(4):
        a(f"v_lshlrev_b32 v{12+2*k}, 16, v{4+k}")
        a(f"v_and_b32 v{13+2*k}, 0xffff0000, v{4+k}")
    for i in range(16):
        a(f"s_waitcnt vmcnt({15-i})")
        X = 64 + 4 * i
        acc = 140 + i
        for k in range(4):
            a(f"v_lshlrev_b32 v20, 16, v{X+k}")
            a(f"v_and_b32 v21, 0xffff0000, v{X+k}")
            a(f"v_mul_f32 v20, v20, v{12+2*k}")
            a(f"v_mul_f32 v21, v21, v{13+2*k}")
            a("v_cvt_pk_bf16_f32 v20, v20, v21")
            a("v_lshlrev_b32 v21, 16, v20")
            a("v_and_b32 v20, 0xffff0000, v20")
            if k == 0:
                a(f"v_add_f32 v{acc}, v20, v21")
            else:
                a(f"v_add_f32 v{acc}, v{acc}, v20")
                a(f"v_add_f32 v{acc}, v{acc}, v21")
    for off in (0x041F, 0x081F, 0x101F, 0x201F, 0x401F):
        for i in range(16):
            a(f"ds_swizzle_b32 v{160+i}, v{140+i} offset:{hex(off)}")
        a("s_waitcnt lgkmcnt(0)")
        for i in range(16):
            a(f"v_add_f32 v{140+i}, v{140+i}, v{160+i}")
    a("v_xor_b32 v22, 32, v1")
    a("v_lshlrev_b32 v22, 2, v22")
    for i in range(16):
        a(f"ds_bpermute_b32 v{160+i}, v22, v{140+i}")
    a("s_waitcnt lgkmcnt(0)")
    a("v_mov_b32 v23, 0")
    for i in range(16):
        a(f"v_add_f32 v{140+i}, v{140+i}, v{160+i}")
        a(f"v_cmp_eq_u32 vcc, {i}, v1")
        a(f"v_cndmask_b32 v23, v23, v{140+i}, vcc")
    bf16r(a, 23)
    a(f"v_mul_f32 v23, {hex(L2E ^ 0x80000000)}, v23")
    a("v_exp_f32 v23, v23")
    a("v_add_f32 v23, 1.0, v23")
    a("v_rcp_f32 v23, v23")
    bf16r(a, 23)
    a("s_lshl_b32 s9, s8, 2")
    a(f"s_add_u32 s9, s9, {WS_G}")
    a("v_lshlrev_b32 v24, 2, v1")
    a("v_add_u32 v24, s9, v24")
    a("v_cmp_gt_u32 vcc, 16, v1")
    a("s_and_saveexec_b64 s[72:73], vcc")
    a(f"buffer_store_dword v23, v24, s[{S_WS}:{S_WS+3}], 0 offen")
    a("s_mov_b64 exec, s[72:73]")
    a("s_endpgm")


G2_PITCH = 192
G2_HALF = 64 * G2_PITCH
G2_BUF = 2 * G2_HALF
LDS_K2 = 2 * G2_BUF


def gen_k2(a):
    a("s_cmp_ge_u32 s2, 256")
    a("s_cbranch_scc1 L_k2_exit")
    load_kernargs(a)
    a("s_lshr_b32 s4, s2, 3")
    a("s_and_b32 s5, s2, 7")
    a("v_and_b32 v1, 63, v0")
    a("v_lshrrev_b32 v2, 6, v0")
    a("v_readfirstlane_b32 s7, v2")
    a("s_waitcnt lgkmcnt(0)")
    srd(a, S_WS, 44, 0x10000000)
    srd(a, S_A, 36, 1376 * 1024)
    srd(a, S_B, 40, 2097152)
    a("s_and_b32 s12, s7, 1")
    a("s_lshr_b32 s13, s7, 1")
    a("s_lshl_b32 s8, s4, 1")
    a("s_add_u32 s8, s8, s12")
    a("s_mul_i32 s8, s8, 88064")
    a("s_mul_i32 s9, s13, 43*1024")
    a("s_add_u32 s8, s8, s9")
    a("v_lshlrev_b32 v4, 4, v1")
    a("v_add_u32 v4, s8, v4")
    a("v_and_b32 v5, 7, v0")
    a("v_lshrrev_b32 v6, 3, v0")
    a("v_lshlrev_b32 v7, 10, v6")
    a("v_lshl_add_u32 v7, v5, 4, v7")
    a("s_lshl_b32 s8, s5, 7")
    a("v_add_u32 v7, s8, v7")
    a("v_add_u32 v8, 0x8000, v7")
    a(f"v_mul_u32_u24 v9, {G2_PITCH}, v6")
    a("v_lshl_add_u32 v9, v5, 4, v9")
    a("v_lshrrev_b32 v10, 4, v1")
    a("v_bfe_u32 v11, v1, 2, 2")
    a("v_and_b32 v12, 3, v1")
    a("v_lshrrev_b32 v13, 1, v10")
    a("v_lshl_add_u32 v13, v13, 3, v11")
    a(f"v_mul_u32_u24 v13, {G2_PITCH}, v13")
    a("v_and_b32 v10, 1, v10")
    a("v_lshl_add_u32 v13, v10, 5, v13")
    a("v_lshl_add_u32 v13, v12, 3, v13")
    a(f"s_mul_i32 s8, s13, {G2_HALF}")
    a("v_add_u32 v13, s8, v13")
    ACC = 96
    for r in range(32):
        a(f"v_mov_b32 v{ACC+r}, 0")
    AF = [16, 32]
    WS_ = 48
    WF = [64, 72]

    def load_w(stage):
        a(f"s_mov_b32 s8, {stage*64*1024}")
        a(f"s_mov_b32 s9, {(688 + stage*64)*1024}")
        a(f"buffer_load_dwordx4 v[{WS_}:{WS_+3}], v7, s[{S_A}:{S_A+3}], s8 offen")
        a(f"buffer_load_dwordx4 v[{WS_+4}:{WS_+7}], v8, s[{S_A}:{S_A+3}], s8 offen")
        a(f"buffer_load_dwordx4 v[{WS_+8}:{WS_+11}], v7, s[{S_A}:{S_A+3}], s9 offen")
        a(f"buffer_load_dwordx4 v[{WS_+12}:{WS_+15}], v8, s[{S_A}:{S_A+3}], s9 offen")

    def store_w(buf):
        b = buf * G2_BUF
        a(f"ds_write_b128 v9, v[{WS_}:{WS_+3}] offset:{b}")
        a(f"ds_write_b128 v9, v[{WS_+4}:{WS_+7}] offset:{b + 32*G2_PITCH}")
        a(f"ds_write_b128 v9, v[{WS_+8}:{WS_+11}] offset:{b + G2_HALF}")
        a(f"ds_write_b128 v9, v[{WS_+12}:{WS_+15}] offset:{b + G2_HALF + 32*G2_PITCH}")

    def nsteps(stage):
        return 4 if stage < 10 else 3

    def load_a(stage, A):
        a(f"s_mov_b32 s8, {stage*4096}")
        for t in range(nsteps(stage)):
            a(f"buffer_load_dwordx4 v[{A+4*t}:{A+4*t+3}], v4, s[{S_WS}:{S_WS+3}], s8 offen offset:{1024*t}")

    def read_frags(buf, t, F):
        for nb in range(2):
            for j in range(2):
                off = buf * G2_BUF + 16 * t * G2_PITCH + 4 * j * G2_PITCH + nb * 64
                a(f"ds_read_b64_tr_b16 v[{F+4*nb+2*j}:{F+4*nb+2*j+1}], v13 offset:{off}")

    load_w(0)
    load_a(0, AF[0])
    a("s_waitcnt vmcnt(4)")
    store_w(0)
    load_w(1)
    a("s_waitcnt lgkmcnt(0)")
    a("s_barrier")
    for s in range(11):
        A = AF[s % 2]
        buf = s % 2
        ns = nsteps(s)
        if s < 10:
            load_a(s + 1, AF[(s + 1) % 2])
            a(f"s_waitcnt vmcnt({4 + nsteps(s+1)})")
        else:
            a("s_waitcnt vmcnt(0)")
        read_frags(buf, 0, WF[0])
        for t in range(ns):
            F = WF[t % 2]
            if t < ns - 1:
                read_frags(buf, t + 1, WF[(t + 1) % 2])
                a("s_waitcnt lgkmcnt(4)")
            else:
                a("s_waitcnt lgkmcnt(0)")
            for nb in range(2):
                c = f"v[{ACC+16*nb}:{ACC+16*nb+15}]"
                a(f"v_mfma_f32_32x32x16_bf16 {c}, v[{A+4*t}:{A+4*t+3}], v[{F+4*nb}:{F+4*nb+3}], {c}")
        if s < 10:
            a(f"s_waitcnt vmcnt({nsteps(s+1)})")
            store_w((s + 1) % 2)
            if s < 9:
                load_w(s + 2)
            a("s_waitcnt lgkmcnt(0)")
            a("s_barrier")
    a("v_and_b32 v2, 31, v1")
    a("v_lshrrev_b32 v3, 5, v1")
    a("s_lshl_b32 s8, s4, 6")
    a("s_lshl_b32 s9, s12, 5")
    a("s_add_u32 s8, s8, s9")
    a("s_lshl_b32 s9, s5, 6")
    a("s_lshl_b32 s10, s13, 5")
    a("s_add_u32 s9, s9, s10")
    a("v_lshlrev_b32 v5, 4, v3")
    a("s_lshl_b32 s10, s8, 2")
    a(f"s_add_u32 s10, s10, {WS_G}")
    a("v_add_u32 v5, s10, v5")
    for q in range(4):
        a(f"buffer_load_dwordx4 v[{16+4*q}:{19+4*q}], v5, s[{S_WS}:{S_WS+3}], 0 offen offset:{32*q}")
    a("v_add_u32 v6, s9, v2")
    a("v_lshlrev_b32 v7, 12, v6")
    a("v_lshl_add_u32 v7, v3, 3, v7")
    a("s_lshl_b32 s10, s8, 1")
    a(f"s_add_u32 s10, s10, {WS_AT}")
    a("v_add_u32 v7, s10, v7")
    for q in range(4):
        a(f"buffer_load_dwordx2 v[{32+2*q}:{33+2*q}], v7, s[{S_WS}:{S_WS+3}], 0 offen offset:{16*q}")
    a("s_barrier")
    a("s_lshl_b32 s10, s7, 12")
    a("v_lshlrev_b32 v9, 4, v1")
    a("v_add_u32 v10, s10, v9")
    a("s_xor_b32 s11, s10, 0x2000")
    a("v_add_u32 v11, s11, v9")
    a("s_cmp_eq_u32 s13, 0")
    a("s_cbranch_scc0 L_k2_w1")
    for q in range(4):
        a(f"ds_write_b128 v10, v[{ACC+16+4*q}:{ACC+19+4*q}] offset:{1024*q}")
    a("s_branch L_k2_wd")
    a.label("L_k2_w1")
    for q in range(4):
        a(f"ds_write_b128 v10, v[{ACC+4*q}:{ACC+3+4*q}] offset:{1024*q}")
    for r in range(16):
        a(f"v_mov_b32 v{ACC+r}, v{ACC+16+r}")
    a.label("L_k2_wd")
    a("s_waitcnt lgkmcnt(0)")
    a("s_barrier")
    for q in range(4):
        a(f"ds_read_b128 v[{48+4*q}:{51+4*q}], v11 offset:{1024*q}")
    a("v_lshlrev_b32 v8, 12, v3")
    a("v_lshl_add_u32 v8, v6, 1, v8")
    a("s_lshl_b32 s10, s8, 10")
    a("v_add_u32 v8, s10, v8")
    a("v_add_u32 v12, 0x2000, v8")
    a("v_add_u32 v13, 0x4000, v8")
    a("v_add_u32 v14, 0x6000, v8")
    a("s_waitcnt vmcnt(0) lgkmcnt(0)")
    for q in range(4):
        addr = (8, 12, 13, 14)[q]
        for p in range(2):
            r = 4 * q + 2 * p
            a(f"v_add_f32 v64, v{ACC+r}, v{48+r}")
            a(f"v_add_f32 v65, v{ACC+r+1}, v{49+r}")
            a("v_cvt_pk_bf16_f32 v64, v64, v65")
            a("v_lshlrev_b32 v65, 16, v64")
            a("v_and_b32 v64, 0xffff0000, v64")
            a(f"v_lshlrev_b32 v66, 16, v{32+2*q+p}")
            a(f"v_and_b32 v67, 0xffff0000, v{32+2*q+p}")
            a(f"v_mul_f32 v66, v{16+r}, v66")
            a(f"v_mul_f32 v67, v{17+r}, v67")
            a(f"v_sub_f32 v68, 1.0, v{16+r}")
            a(f"v_sub_f32 v69, 1.0, v{17+r}")
            a("v_cvt_pk_bf16_f32 v66, v66, v67")
            a("v_cvt_pk_bf16_f32 v68, v68, v69")
            a("v_lshlrev_b32 v69, 16, v68")
            a("v_and_b32 v68, 0xffff0000, v68")
            a("v_mul_f32 v69, v69, v65")
            a("v_mul_f32 v68, v68, v64")
            a("v_cvt_pk_bf16_f32 v68, v69, v68")
            a("v_lshlrev_b32 v67, 16, v66")
            a("v_and_b32 v66, 0xffff0000, v66")
            a("v_lshlrev_b32 v69, 16, v68")
            a("v_and_b32 v68, 0xffff0000, v68")
            a("v_add_f32 v67, v67, v69")
            a("v_add_f32 v66, v66, v68")
            a(f"v_cvt_pk_bf16_f32 v{70+p}, v67, v66")
            a(f"buffer_store_short v{70+p}, v{addr}, s[{S_B}:{S_B+3}], 0 offen offset:{1024*(2*p)}")
            a(f"buffer_store_short_d16_hi v{70+p}, v{addr}, s[{S_B}:{S_B+3}], 0 offen offset:{1024*(2*p+1)}")
    a.label("L_k2_exit")
    a("s_endpgm")


HEADER = open(os.path.join(os.path.dirname(os.path.abspath(__file__)), "..", "cdna_kernels", NAME + ".s.ref")).read()


def kd(name, vgpr, sgpr):
    acc = (vgpr + 3) // 4 * 4
    return f""".amdhsa_kernel {name}
  .amdhsa_next_free_vgpr {vgpr}
  .amdhsa_next_free_sgpr {sgpr}
  .amdhsa_accum_offset {acc}
  .amdhsa_group_segment_fixed_size 0
  .amdhsa_kernarg_size 120
  .amdhsa_user_sgpr_count 2
  .amdhsa_user_sgpr_kernarg_segment_ptr 1
  .amdhsa_system_sgpr_workgroup_id_x 1
.end_amdhsa_kernel
"""


def main():
    head = [l for l in HEADER.splitlines() if l.startswith(";") and "@launch" not in l]
    out = list(head)
    k1 = NAME + "_kernel"
    k2 = "gm_stage2_kernel"
    out.append(f"; @launch kernel={k1} grid=({N_K1},1,1) block=(256,1,1) lds={LDS_K1}")
    out.append(f"; @launch kernel={k2} grid=(256,1,1) block=(256,1,1) lds={LDS_K2}")
    out.append('.amdgcn_target "amdgcn-amd-amdhsa--gfx950"')
    out.append(".text")

    a = Asm()
    a(f"s_cmp_ge_u32 s2, {N_K1}")
    a("s_cbranch_scc1 L_k1_exit")
    load_kernargs(a)
    a("s_mov_b32 s74, 0x7fff")
    a(f"s_cmp_ge_u32 s2, {N_SSM + N_G1}")
    a("s_cbranch_scc1 L_gate")
    a(f"s_cmp_ge_u32 s2, {N_SSM}")
    a("s_cbranch_scc1 L_gemm1")
    gen_ssm(a)
    a.label("L_gemm1")
    gen_gemm1(a)
    a.label("L_gate")
    gen_gate(a)
    a.label("L_k1_exit")
    a("s_endpgm")
    body1 = a.text()
    v1, s1 = a.maxv + 1, max(a.maxs, 74) + 1

    b = Asm()
    gen_k2(b)
    v2, s2 = b.maxv + 1, b.maxs + 1

    for nm, body in ((k1, body1), (k2, b.text())):
        out.append(f".globl {nm}")
        out.append(".p2align 8")
        out.append(f".type {nm},@function")
        out.append(f"{nm}:")
        out.append(body)
    out.append('.section .rodata,"a"')
    out.append(".p2align 6")
    out.append(kd(k1, v1, s1))
    out.append(".p2align 6")
    out.append(kd(k2, v2, s2))
    path = os.path.join(os.path.dirname(os.path.abspath(__file__)), "..", "cdna_kernels", NAME + ".s")
    open(path, "w").write("\n".join(out))
    print("wrote", path, "vgpr", v1, v2, "sgpr", s1, s2)


if __name__ == "__main__":
    main()
```

```python
import os

G1_SLOT = 20480
G1_NS = 4
G1_XO = 12288
LDS_G1 = G1_NS * G1_SLOT
N_CT = 15
NST = 16


def gen_gemm1(a, G):
    srd, ts, ts_dump, VM, f2h = G.srd, G.ts, G.ts_dump, G.VM, G.f2h
    S_U, S_WS, S_A, S_B = G.S_U, G.S_WS, G.S_A, G.S_B
    ts(a)
    a(f"s_sub_u32 s3, s2, {G.N_SSM}")
    a("s_and_b32 s4, s3, 15")
    a("s_lshr_b32 s5, s3, 4")
    a("v_and_b32 v1, 63, v0")
    a("v_lshrrev_b32 v2, 6, v0")
    a("v_readfirstlane_b32 s7, v2")
    a("v_and_b32 v2, 31, v1")
    a("v_lshrrev_b32 v3, 5, v1")
    a("v_lshrrev_b32 v8, 2, v1")
    a("v_and_b32 v9, 3, v1")
    a("v_bfe_u32 v10, v1, 4, 2")
    a("v_xor_b32 v9, v9, v10")
    a("s_lshl_b32 s8, s4, 7")
    a("s_lshl_b32 s9, s7, 5")
    a("s_add_u32 s8, s8, s9")
    a("v_add_u32 v8, s8, v8")
    a("v_lshlrev_b32 v8, 10, v8")
    a("v_lshl_add_u32 v8, v9, 4, v8")
    a("v_add_u32 v9, 0x4000, v8")
    a("v_lshrrev_b32 v10, 4, v1")
    a("v_bfe_u32 v11, v1, 2, 2")
    a("v_and_b32 v12, 3, v1")
    a("s_and_b32 s8, s7, 1")
    a("s_mul_i32 s8, s8, 12")
    a("s_mul_i32 s9, s5, 192")
    for j in range(3):
        a(f"v_add_u32 v13, {4*j}, v10")
        a("v_add_u32 v13, s8, v13")
        a("v_mul_u32_u24 v14, 11, v13")
        a("v_lshrrev_b32 v14, 5, v14")
        a("v_mul_u32_u24 v15, 3, v14")
        a("v_sub_u32 v15, v13, v15")
        a("v_lshl_add_u32 v14, v14, 2, v11")
        a("v_mul_u32_u24 v14, 2752, v14")
        a("v_lshl_add_u32 v14, v15, 6, v14")
        a("v_lshl_add_u32 v14, v12, 4, v14")
        a(f"v_add_u32 v{5+j}, s9, v14")
    a("s_mul_i32 s14, s7, 3072")
    a("s_lshl_b32 s15, s7, 11")
    a(f"s_add_u32 s15, s15, {G1_XO}")
    a("v_mul_u32_u24 v13, 1536, v3")
    a("v_lshl_add_u32 v13, v11, 6, v13")
    a("v_and_b32 v14, 1, v10")
    a("v_lshl_add_u32 v13, v14, 5, v13")
    a("v_lshl_add_u32 v13, v12, 3, v13")
    a(f"v_add_u32 v14, {2*G1_SLOT}, v13")
    a("v_bfe_u32 v15, v2, 2, 2")
    a("v_xor_b32 v15, v15, v3")
    a("v_lshlrev_b32 v16, 6, v2")
    a("v_add_u32 v16, s15, v16")
    a("v_lshl_add_u32 v17, v15, 4, v16")
    a("v_xor_b32 v15, 2, v15")
    a("v_lshl_add_u32 v18, v15, 4, v16")
    a(f"v_add_u32 v19, {2*G1_SLOT}, v17")
    a(f"v_add_u32 v20, {2*G1_SLOT}, v18")
    a("s_waitcnt lgkmcnt(0)")
    srd(a, S_U, 16, 2097152)
    srd(a, S_WS, 44, 0x10000000)
    a("s_cmp_ge_u32 s7, 2")
    a("s_cselect_b32 s32, s34, s32")
    a("s_cselect_b32 s33, s35, s33")
    srd(a, S_A, 32, 512 * 1376 * 2)
    vm = VM(a)
    ACC = 88
    WF = [24, 48]
    XF = [72, 76]

    def group(stage):
        slot = stage % G1_NS
        out = []
        for j in range(3):
            out.append(([f"s_mov_b32 s8, {stage*32*2752}",
                         f"s_add_u32 m0, s14, {slot*G1_SLOT + j*1024}"],
                        f"buffer_load_dwordx4 v{5+j}, s[{S_A}:{S_A+3}], s8 offen lds", stage))
        for e in range(2):
            out.append(([f"s_mov_b32 s8, {stage*64}",
                         f"s_add_u32 m0, s15, {slot*G1_SLOT + e*1024}"],
                        f"buffer_load_dwordx4 v{8+e}, s[{S_U}:{S_U+3}], s8 offen lds", stage))
        return out

    def emit_items(items):
        for st, ld, tag in items:
            for i in st:
                a(i)
            vm.issue(ld, tag)

    lg = []

    def frag_reads(slot, t):
        hi = slot >= 2
        so = (slot % 2) * G1_SLOT
        F = WF[t]
        out = [(f"ds_read_b128 v[{XF[t]}:{XF[t]+3}], v{(19 if hi else 17) + t} offset:{so}", (t, 0))]
        for m in range(6):
            for j in range(2):
                off = so + (m // 3) * 6144 + (12 * t + 3 * j + m % 3) * 256
                out.append((f"ds_read_b64_tr_b16 v[{F+4*m+2*j}:{F+4*m+2*j+1}], v{14 if hi else 13} offset:{off}", (t, m)))
        return out

    def lds_issue(item):
        a(item[0])
        lg.append(item[1])

    def lds_wait(tag):
        idx = max(i for i, t in enumerate(lg) if t == tag)
        n = len(lg) - 1 - idx
        a(f"s_waitcnt lgkmcnt({min(n, 15)})")

    for s in range(G1_NS - 1):
        emit_items(group(s))
    for r in range(96):
        a(f"v_mov_b32 v{ACC+r}, 0")
    for s in range(NST):
        slot = s % G1_NS
        vm.wait(s)
        a("s_barrier")
        if s % 2 == 0:
            ts(a)
        del lg[:]
        pend = group(s + G1_NS - 1) if s + G1_NS - 1 < NST else []
        for it in frag_reads(slot, 0):
            lds_issue(it)
        for t in range(2):
            nxt = frag_reads(slot, 1) if t == 0 else []
            for m in range(6):
                lds_wait((t, m))
                c = f"v[{ACC+16*m}:{ACC+16*m+15}]"
                a(f"v_mfma_f32_32x32x16_bf16 {c}, v[{WF[t]+4*m}:{WF[t]+4*m+3}], v[{XF[t]}:{XF[t]+3}], {c}")
                for it in nxt[2 * m + (1 if m else 0):2 * m + 3]:
                    lds_issue(it)
                if pend and (t == 1 or m >= 3):
                    emit_items([pend.pop(0)])

    K1 = -2.0 * 0.7978845608028654 * 1.4426950408889634
    a(f"v_mov_b32 v21, {f2h(K1)}")
    a(f"v_mov_b32 v22, {f2h(K1 * 0.044715)}")
    a("s_lshl_b32 s8, s4, 2")
    a("s_add_u32 s8, s8, s7")
    a("s_mul_i32 s8, s8, 172")
    a("s_mul_i32 s9, s5, 12")
    a("s_add_u32 s8, s8, s9")
    a("s_lshl_b32 s8, s8, 9")
    a("v_lshlrev_b32 v5, 4, v2")
    a("v_lshl_add_u32 v5, v3, 3, v5")
    a("v_add_u32 v5, s8, v5")
    a("v_add_u32 v6, 0x1000, v5")
    for nb in range(3):
        if nb == 1:
            a(f"s_cmp_eq_u32 s5, {N_CT-1}")
            a("s_cbranch_scc1 L_g1_done")
        Gd, U = ACC + 16 * nb, ACC + 48 + 16 * nb
        for q in range(4):
            for p in range(2):
                r = 4 * q + 2 * p
                T = 24 + 12 * p
                a(f"""
                v_cvt_pk_bf16_f32 v{T}, v{Gd+r}, v{Gd+r+1}
                v_cvt_pk_bf16_f32 v{T+1}, v{U+r}, v{U+r+1}
                v_lshlrev_b32 v{T+2}, 16, v{T}
                v_and_b32 v{T+3}, 0xffff0000, v{T}
                v_lshlrev_b32 v{T+4}, 16, v{T+1}
                v_and_b32 v{T+5}, 0xffff0000, v{T+1}
                v_mul_f32 v{T+6}, v{T+2}, v{T+2}
                v_mul_f32 v{T+7}, v{T+3}, v{T+3}
                v_fma_f32 v{T+6}, v{T+6}, v22, v21
                v_fma_f32 v{T+7}, v{T+7}, v22, v21
                v_mul_f32 v{T+6}, v{T+6}, v{T+2}
                v_mul_f32 v{T+7}, v{T+7}, v{T+3}
                v_exp_f32 v{T+6}, v{T+6}
                v_exp_f32 v{T+7}, v{T+7}
                v_add_f32 v{T+6}, 1.0, v{T+6}
                v_add_f32 v{T+7}, 1.0, v{T+7}
                v_rcp_f32 v{T+6}, v{T+6}
                v_rcp_f32 v{T+7}, v{T+7}
                v_mul_f32 v{T+6}, v{T+6}, v{T+2}
                v_mul_f32 v{T+7}, v{T+7}, v{T+3}
                v_cvt_pk_bf16_f32 v{T+6}, v{T+6}, v{T+7}
                v_lshlrev_b32 v{T+7}, 16, v{T+6}
                v_and_b32 v{T+6}, 0xffff0000, v{T+6}
                v_mul_f32 v{T+7}, v{T+7}, v{T+4}
                v_mul_f32 v{T+6}, v{T+6}, v{T+5}
                v_cvt_pk_bf16_f32 v{64+2*(q%2)+p}, v{T+7}, v{T+6}
                """)
            R = 64 + 2 * (q % 2)
            off = (4 * nb + q) * 512
            ad = 5 if off < 4096 else 6
            a(f"buffer_store_dwordx2 v[{R}:{R+1}], v{ad}, s[{S_WS}:{S_WS+3}], 0 offen offset:{off % 4096}")
    a.label("L_g1_done")
    ts(a)
    ts_dump(a, S_WS)
    a("s_endpgm")


def gen_gate(a, G):
    srd, bf16r = G.srd, G.bf16r
    S_U, S_WS, S_A = G.S_U, G.S_WS, G.S_A
    L2E, WS_G = G.L2E, G.WS_G
    a(f"s_sub_u32 s3, s2, {G.N_SSM + G.N_G1}")
    a("s_waitcnt lgkmcnt(0)")
    srd(a, S_U, 16, 2097152)
    srd(a, S_WS, 44, 0x10000000)
    srd(a, S_A, 38, 1024)
    a("v_and_b32 v1, 63, v0")
    a("v_lshrrev_b32 v2, 6, v0")
    a("v_readfirstlane_b32 s7, v2")
    a("v_lshlrev_b32 v3, 4, v1")
    a(f"buffer_load_dwordx4 v[4:7], v3, s[{S_A}:{S_A+3}], 0 offen")
    a("s_lshl_b32 s8, s3, 7")
    a("s_lshl_b32 s9, s7, 5")
    a("s_add_u32 s8, s8, s9")
    a("s_lshl_b32 s9, s8, 10")
    a("v_add_u32 v2, s9, v3")
    for k in range(1, 8):
        a(f"v_add_u32 v{7+k}, {0x1000*k}, v2")
    bases = [2] + [7 + k for k in range(1, 8)]
    for i in range(32):
        a(f"buffer_load_dwordx4 v[{64+4*i}:{67+4*i}], v{bases[i//4]}, s[{S_U}:{S_U+3}], 0 offen offset:{1024*(i%4)}")
    a("s_waitcnt vmcnt(32)")
    for k in range(4):
        a(f"v_lshlrev_b32 v{16+2*k}, 16, v{4+k}")
        a(f"v_and_b32 v{17+2*k}, 0xffff0000, v{4+k}")
    AC = 192
    for i in range(32):
        a(f"s_waitcnt vmcnt({31-i})")
        X = 64 + 4 * i
        acc = AC + i
        for k in range(4):
            a(f"v_lshlrev_b32 v24, 16, v{X+k}")
            a(f"v_and_b32 v25, 0xffff0000, v{X+k}")
            a(f"v_mul_f32 v24, v24, v{16+2*k}")
            a(f"v_mul_f32 v25, v25, v{17+2*k}")
            a("v_cvt_pk_bf16_f32 v24, v24, v25")
            a("v_lshlrev_b32 v25, 16, v24")
            a("v_and_b32 v24, 0xffff0000, v24")
            if k == 0:
                a(f"v_add_f32 v{acc}, v24, v25")
            else:
                a(f"v_add_f32 v{acc}, v{acc}, v24")
                a(f"v_add_f32 v{acc}, v{acc}, v25")
    SW = 64
    for off in (0x041F, 0x081F, 0x101F, 0x201F, 0x401F):
        for i in range(32):
            a(f"ds_swizzle_b32 v{SW+i}, v{AC+i} offset:{hex(off)}")
        a("s_waitcnt lgkmcnt(0)")
        for i in range(32):
            a(f"v_add_f32 v{AC+i}, v{AC+i}, v{SW+i}")
    a("v_xor_b32 v26, 32, v1")
    a("v_lshlrev_b32 v26, 2, v26")
    for i in range(32):
        a(f"ds_bpermute_b32 v{SW+i}, v26, v{AC+i}")
    a("s_waitcnt lgkmcnt(0)")
    a("v_mov_b32 v27, 0")
    for i in range(32):
        a(f"v_add_f32 v{AC+i}, v{AC+i}, v{SW+i}")
        a(f"v_cmp_eq_u32 vcc, {i}, v1")
        a(f"v_cndmask_b32 v27, v27, v{AC+i}, vcc")
    bf16r(a, 27)
    a(f"v_mul_f32 v27, {hex(L2E ^ 0x80000000)}, v27")
    a("v_exp_f32 v27, v27")
    a("v_add_f32 v27, 1.0, v27")
    a("v_rcp_f32 v27, v27")
    bf16r(a, 27)
    a("s_lshl_b32 s9, s8, 2")
    a(f"s_add_u32 s9, s9, {WS_G}")
    a("v_lshlrev_b32 v28, 2, v1")
    a("v_add_u32 v28, s9, v28")
    a("v_cmp_gt_u32 vcc, 32, v1")
    a("s_and_saveexec_b64 s[72:73], vcc")
    a(f"buffer_store_dword v27, v28, s[{S_WS}:{S_WS+3}], 0 offen")
    a("s_mov_b64 exec, s[72:73]")
    a("s_endpgm")
```

```python
import os

PR = 0
KT = 4096
KT_ARR = 7680
U0 = KT + 4 * KT_ARR
U_CH = 8576
U_C1 = 4288
TBL0 = U0 + 2 * U_CH
TBLP = 4352
LDS_SSM = TBL0 + 4 * TBLP


def merge(a, main, side, every=2):
    side = list(side)
    k = 0
    for i, ins in enumerate(main):
        a(ins)
        if i % every == every - 1 and k < len(side):
            a(side[k])
            k += 1
    while k < len(side):
        a(side[k])
        k += 1


def gen_ssm(a, G):
    srd, exp_precise, bf16r, ts, ts_dump = G.srd, G.exp_precise, G.bf16r, G.ts, G.ts_dump
    S_U, S_WS, S_A, S_B, S_C, S_D = G.S_U, G.S_WS, G.S_A, G.S_B, G.S_C, G.S_D
    L2E, INV2PI, WS_AT = G.L2E, G.INV2PI, G.WS_AT
    ts(a)
    if os.environ.get("XMAP", "1") == "1":
        a("s_and_b32 s3, s2, 7")
        a("s_lshl_b32 s3, s3, 5")
        a("s_lshr_b32 s4, s2, 3")
        a("s_add_u32 s3, s3, s4")
    else:
        a("s_mov_b32 s3, s2")
    a("s_lshl_b32 s4, s3, 2")
    a("s_lshl_b32 s8, s3, 9")
    a("s_lshl_b32 s3, s3, 1")
    a("v_and_b32 v1, 63, v0")
    a("v_lshrrev_b32 v2, 6, v0")
    a("v_readfirstlane_b32 s7, v2")
    a("v_lshlrev_b32 v5, 1, v0")
    a("v_add_u32 v5, s8, v5")
    a("s_waitcnt lgkmcnt(0)")
    a("s_load_dword s5, s[26:27], s4")
    a("s_load_dword s6, s[28:29], s4")
    srd(a, S_A, 18, 131072)
    srd(a, S_B, 20, 131072)
    srd(a, S_C, 22, 131072)
    srd(a, S_D, 24, 131072)
    for k, s in enumerate((S_A, S_B, S_C, S_D)):
        a(f"buffer_load_ushort v{20+k}, v5, s[{s}:{s+3}], 0 offen")
    srd(a, S_U, 16, 2097152)
    srd(a, S_WS, 44, 0x10000000)
    a("v_lshlrev_b32 v81, 13, v0")
    a("v_add_u32 v81, s4, v81")
    a("v_add_u32 v82, 0x1000, v81")
    a("v_add_u32 v83, 0x2000, v81")
    uloads = []
    for i in range(4):
        uloads.append(f"buffer_load_dword v{72+i}, v81, s[{S_U}:{S_U+3}], 0 offen offset:{1024*i}")
    for i in range(4):
        uloads.append(f"buffer_load_dword v{76+i}, v82, s[{S_U}:{S_U+3}], 0 offen offset:{1024*i}")
    uloads.append(f"buffer_load_dword v80, v83, s[{S_U}:{S_U+3}], 0 offen")
    a("v_mov_b32 v28, 0")
    a("v_mov_b32 v29, 0")
    a("v_mov_b32 v30, 0")
    a("v_mov_b32 v31, 0")
    a("v_lshlrev_b32 v6, 4, v0")
    a("v_cmp_gt_u32 vcc, 160, v0")
    a("s_and_saveexec_b64 s[72:73], vcc")
    a("s_cbranch_execz L_ssm_nz")
    for arr in range(4):
        a(f"ds_write_b128 v6, v[28:31] offset:{KT + arr*KT_ARR}")
    a.label("L_ssm_nz")
    a("s_mov_b64 exec, s[72:73]")
    a("s_waitcnt lgkmcnt(0)")
    a("s_lshl_b32 s11, s5, 16")
    a("s_and_b32 s12, s5, 0xffff0000")
    a("s_lshl_b32 s13, s6, 16")
    a("s_and_b32 s14, s6, 0xffff0000")
    a("s_cmp_ge_u32 s7, 2")
    a("s_cselect_b32 s11, s12, s11")
    a("s_cselect_b32 s13, s14, s13")
    a("s_lshr_b32 s15, s7, 1")
    a("s_and_b32 s16, s7, 1")
    a("v_mov_b32 v24, s11")
    exp_precise(a, 25, 24, 26, 27)
    bf16r(a, 25)
    a("s_waitcnt vmcnt(0)")
    for k in range(4):
        a(f"v_lshlrev_b32 v{20+k}, 16, v{20+k}")
    exp_precise(a, 32, 20, 26, 27)
    bf16r(a, 32)
    a("v_mul_f32 v32, v32, v25")
    a(f"v_mul_f32 v32, {hex(L2E ^ 0x80000000)}, v32")
    a("v_mul_f32 v33, v21, v25")
    a(f"v_mul_f32 v33, {hex(INV2PI)}, v33")
    a("v_mul_f32 v34, v22, v25")
    a("v_mul_f32 v35, v23, v25")
    a("v_add_f32 v34, v34, v34")
    a("v_add_f32 v35, v35, v35")
    a(f"ds_write_b128 v6, v[32:35] offset:{PR}")
    ROWS = [(e, 0) for e in range(8)] + [(256 + 2 * e, 1) for e in range(4)] + \
           [(512 + 256 * ap + 4 * e, 2) for ap in range(2) for e in range(2)] + \
           [(1024 + 256 * ap, 3) for ap in range(5)] + [(512, 1), (1024, 2)]
    a("v_and_b32 v2, 31, v1")
    a("v_lshrrev_b32 v3, 5, v1")
    a("v_mov_b32 v4, 0")
    for i, (pp, _) in enumerate(ROWS):
        if pp:
            a(f"s_mov_b32 s17, {G.f2h(float(pp))}")
            a(f"v_writelane_b32 v4, s17, {i}")
            a(f"v_writelane_b32 v4, s17, {i+32}")
    a("v_lshlrev_b32 v5, 3, v2")
    a("v_cvt_f32_u32 v5, v5")
    a("s_lshl_b32 s17, s7, 10")
    a("v_lshlrev_b32 v7, 6, v3")
    a("v_add_u32 v7, s17, v7")
    KA = 40
    for r in range(16):
        a(f"v_mov_b32 v{KA+r}, 0")
    a("s_waitcnt lgkmcnt(0)")
    a("s_barrier")
    ts(a)

    PB = [8, 12, 16]
    TM = [(20, 21, 22, 23, 24, 25), (26, 27, 28, 29, 30, 31)]
    FR2 = [88, 104]

    def poff(n):
        return PR + (8 * (n // 4) + n % 4) * 16

    def front(n):
        lr, li = PB[n % 3], PB[n % 3] + 1
        t = TM[n % 2]
        return [
            f"v_mul_f32 v{t[0]}, v{lr}, v4",
            f"v_mul_f32 v{t[1]}, v{li}, v4",
            f"v_mul_f32 v{t[3]}, v{lr}, v5",
            f"v_mul_f32 v{t[4]}, v{li}, v5",
            f"v_exp_f32 v{t[0]}, v{t[0]}",
            f"v_cos_f32 v{t[2]}, v{t[1]}",
            f"v_sin_f32 v{t[1]}, v{t[1]}",
            f"v_exp_f32 v{t[3]}, v{t[3]}",
            f"v_cos_f32 v{t[5]}, v{t[4]}",
            f"v_sin_f32 v{t[4]}, v{t[4]}",
        ]

    def back(n):
        cr, ci = PB[n % 3] + 2, PB[n % 3] + 3
        t = TM[n % 2]
        F = FR2[(n // 4) % 2]
        m = n % 4
        return [
            f"v_mul_f32 v32, v{t[0]}, v{t[2]}",
            f"v_mul_f32 v33, v{t[0]}, v{t[1]}",
            f"v_mul_f32 v34, v{t[3]}, v{t[5]}",
            f"v_mul_f32 v35, v{t[3]}, -v{t[4]}",
            f"v_mul_f32 v36, v{cr}, v32",
            f"v_mul_f32 v37, v{cr}, v33",
            f"v_fma_f32 v36, -v{ci}, v33, v36",
            f"v_fma_f32 v37, v{ci}, v32, v37",
            f"v_cvt_pk_bf16_f32 v{F+8+m}, v34, v35",
            f"v_cvt_pk_bf16_f32 v{F+m}, v36, v37",
            f"v_lshlrev_b32 v38, 16, v{F+8+m}",
            f"v_and_b32 v39, 0xffff0000, v{F+8+m}",
            f"v_lshlrev_b32 v32, 16, v{F+m}",
            f"v_and_b32 v33, 0xffff0000, v{F+m}",
            f"v_sub_f32 v34, v34, v38",
            f"v_sub_f32 v35, v35, v39",
            f"v_sub_f32 v36, v36, v32",
            f"v_sub_f32 v37, v37, v33",
            f"v_cvt_pk_bf16_f32 v{F+12+m}, v34, v35",
            f"v_cvt_pk_bf16_f32 v{F+4+m}, v36, v37",
        ]

    NN = 32
    a(f"ds_read_b128 v[{PB[0]}:{PB[0]+3}], v7 offset:{poff(0)}")
    a(f"ds_read_b128 v[{PB[1]}:{PB[1]+3}], v7 offset:{poff(1)}")
    a("s_waitcnt lgkmcnt(1)")
    for ins in front(0):
        a(ins)
    for n in range(NN):
        if n + 2 < NN:
            P = PB[(n + 2) % 3]
            a(f"ds_read_b128 v[{P}:{P+3}], v7 offset:{poff(n+2)}")
            a("s_waitcnt lgkmcnt(1)")
        else:
            a("s_waitcnt lgkmcnt(0)")
        if n % 2 == 0 and n // 2 < len(uloads):
            a(uloads[n // 2])
        merge(a, back(n), front(n + 1) if n + 1 < NN else [], every=2)
        if n % 4 == 3:
            F = FR2[(n // 4) % 2]
            c = f"v[{KA}:{KA+15}]"
            a(f"v_mfma_f32_32x32x16_bf16 {c}, v[{F}:{F+3}], v[{F+8}:{F+11}], {c}")
            a(f"v_mfma_f32_32x32x16_bf16 {c}, v[{F}:{F+3}], v[{F+12}:{F+15}], {c}")
            a(f"v_mfma_f32_32x32x16_bf16 {c}, v[{F+4}:{F+7}], v[{F+8}:{F+11}], {c}")
    a(f"s_mul_i32 s17, s7, {TBLP}")
    a(f"s_add_u32 s17, s17, {TBL0}")
    for sh in range(4):
        a(f"v_lshlrev_b32 v{20+sh}, {5-sh}, v2")
        a(f"v_add_u32 v{20+sh}, s17, v{20+sh}")
    a("v_cmp_eq_u32 vcc, 1, v3")
    for q in range(3):
        for r in range(4):
            ad = []
            for kg in range(2):
                row = 8 * q + 4 * kg + r
                if row < len(ROWS):
                    pp, sg = ROWS[row]
                    ad.append((sg, sg * 1024 + 4 * (pp >> sg)))
                else:
                    ad.append(None)
            (s0, b0) = ad[0]
            a(f"v_add_u32 v24, {b0}, v{20+s0}")
            if ad[1] is None:
                a(f"v_mov_b32 v25, s17")
                a(f"v_add_u32 v25, {TBLP-16}, v25")
            else:
                (s1, b1) = ad[1]
                a(f"v_add_u32 v25, {b1}, v{20+s1}")
            a("v_cndmask_b32 v24, v24, v25, vcc")
            a(f"ds_write_b32 v24, v{KA+4*q+r}")
    ts(a)
    a("s_waitcnt vmcnt(0)")
    ts(a)
    a("s_mov_b32 s8, 0x05040100")
    a("s_mov_b32 s9, 0x07060302")
    a("v_lshlrev_b32 v6, 4, v0")
    for ch, sel in ((0, "s8"), (1, "s9")):
        for i in range(4):
            a(f"v_perm_b32 v{36+8*ch+i}, v{73+2*i}, v{72+2*i}, {sel}")
        for i in range(4):
            a(f"v_perm_b32 v{40+8*ch+i}, v{74+2*i}, v{73+2*i}, {sel}")
        a(f"ds_write_b128 v6, v[{36+8*ch}:{39+8*ch}] offset:{U0 + ch*U_CH + 64}")
        a(f"ds_write_b128 v6, v[{40+8*ch}:{43+8*ch}] offset:{U0 + ch*U_CH + U_C1 + 64}")
    a("v_cmp_eq_u32 vcc, 0, v0")
    a("s_and_saveexec_b64 s[72:73], vcc")
    a("s_cbranch_execz L_ssm_np")
    for r in range(4):
        a(f"v_mov_b32 v{28+r}, 0")
    for ch in range(2):
        for c in range(4):
            a(f"ds_write_b128 v6, v[28:31] offset:{U0 + ch*U_CH + 16*c}")
        for c in range(3):
            a(f"ds_write_b128 v6, v[28:31] offset:{U0 + ch*U_CH + U_C1 + 16*c}")
    a("v_mov_b32 v52, 0")
    a("v_mov_b32 v53, 0")
    a("v_mov_b32 v54, 0")
    a("v_lshlrev_b32 v55, 16, v72")
    a(f"ds_write_b128 v6, v[52:55] offset:{U0 + U_C1 + 48}")
    a("v_mov_b32 v56, 0")
    a("v_mov_b32 v57, 0")
    a("v_mov_b32 v58, 0")
    a("v_and_b32 v59, 0xffff0000, v72")
    a(f"ds_write_b128 v6, v[56:59] offset:{U0 + U_CH + U_C1 + 48}")
    a.label("L_ssm_np")
    a("s_mov_b64 exec, s[72:73]")
    a("s_waitcnt lgkmcnt(0)")
    ts(a)
    a("s_barrier")
    ts(a)

    a("s_lshl_b32 s17, s16, 6")
    a("v_add_u32 v2, s17, v1")
    a(f"s_mul_i32 s19, s15, {2*TBLP}")
    a(f"s_add_u32 s19, s19, {TBL0}")
    a("s_mul_i32 s18, s15, %d" % (2 * KT_ARR))
    for cc in range(2):
        a("s_lshl_b32 s17, s16, 7")
        a(f"s_add_u32 s17, s17, {64*cc}")
        a("v_add_u32 v3, s17, v1")
        a("v_or_b32 v4, 1, v3")
        a("v_ffbh_u32 v4, v4")
        a("v_sub_u32 v4, 27, v4")
        a("v_max_i32 v4, 0, v4")
        a("v_min_u32 v5, 1, v4")
        a("v_lshlrev_b32 v6, v4, 1")
        a("v_lshrrev_b32 v6, 1, v6")
        a("v_sub_u32 v6, v6, v5")
        a("v_lshlrev_b32 v7, 10, v4")
        a("v_add_u32 v7, s19, v7")
        a("v_lshlrev_b32 v8, 3, v3")
        for i in range(8):
            a(f"v_add_u32 v9, {7-i}, v8")
            a("v_bfe_u32 v10, v9, v4, v5")
            a("v_add3_u32 v9, v9, v6, v10")
            a("v_lshrrev_b32 v9, v4, v9")
            a("v_lshl_add_u32 v9, v9, 2, v7")
            a(f"ds_read2st64_b32 v[{16+2*i}:{17+2*i}], v9 offset0:0 offset1:{TBLP//256}")
        a("v_lshrrev_b32 v9, 2, v3")
        a("v_mul_u32_u24 v9, 80, v9")
        a("v_and_b32 v10, 3, v3")
        a("v_lshl_add_u32 v9, v10, 4, v9")
        a("v_add_u32 v9, s18, v9")
        for i in range(8):
            a(f"s_waitcnt lgkmcnt({7-i})")
            a(f"v_add_f32 v{16+2*i}, v{16+2*i}, v{17+2*i}")
        for p in range(4):
            a(f"v_cvt_pk_bf16_f32 v{32+p}, v{16+4*p}, v{18+4*p}")
        for p in range(4):
            a(f"v_lshlrev_b32 v40, 16, v{32+p}")
            a(f"v_and_b32 v41, 0xffff0000, v{32+p}")
            a(f"v_sub_f32 v40, v{16+4*p}, v40")
            a(f"v_sub_f32 v41, v{18+4*p}, v41")
            a(f"v_cvt_pk_bf16_f32 v{36+p}, v40, v41")
        a(f"ds_write_b128 v9, v[32:35] offset:{KT + 2560}")
        a(f"ds_write_b128 v9, v[36:39] offset:{KT + KT_ARR + 2560}")
    a("s_waitcnt lgkmcnt(0)")
    a("s_barrier")
    ts(a)

    a("v_and_b32 v2, 31, v1")
    a("v_lshrrev_b32 v3, 5, v1")
    a("v_and_b32 v4, 1, v2")
    a("v_cmp_eq_u32 vcc, 1, v4")
    a(f"v_mov_b32 v4, {U_C1+48}")
    a("v_cndmask_b32 v4, v4, 50, vcc")
    a("v_lshl_add_u32 v4, v2, 1, v4")
    a("v_lshlrev_b32 v5, 4, v3")
    a("v_sub_u32 v4, v4, v5")
    a("s_mul_i32 s17, s15, %d" % U_CH)
    a("s_lshl_b32 s19, s16, 5")
    a("s_sub_u32 s17, s17, s19")
    a(f"s_add_u32 s17, s17, {U0}")
    a("v_add_u32 v4, s17, v4")
    a("v_add_u32 v5, 1024, v4")
    a("v_add_u32 v6, 2048, v4")
    a("v_add_u32 v7, 3072, v4")
    a("v_mul_u32_u24 v8, 80, v2")
    a("v_lshl_add_u32 v8, v3, 4, v8")
    a("s_lshl_b32 s19, s16, 5")
    a("s_add_u32 s19, s19, s18")
    a(f"s_add_u32 s19, s19, {KT + 80}")
    a("v_add_u32 v8, s19, v8")
    ACC0, ACC1 = 64, 80
    FR = [16, 40]

    def issue(dp, F):
        ra = 4 if dp < 16 else 5
        rb = 6 if dp < 16 else 7
        o = 16 * (dp % 16)
        a(f"ds_read2_b32 v[{F}:{F+1}], v{ra} offset0:{o} offset1:{o+1}")
        a(f"ds_read2_b32 v[{F+2}:{F+3}], v{ra} offset0:{o+2} offset1:{o+3}")
        a(f"ds_read2_b32 v[{F+4}:{F+5}], v{rb} offset0:{o} offset1:{o+1}")
        a(f"ds_read2_b32 v[{F+6}:{F+7}], v{rb} offset0:{o+2} offset1:{o+3}")
        ob = 80 * (31 - dp)
        a(f"ds_read_b128 v[{F+8}:{F+11}], v8 offset:{ob}")
        a(f"ds_read_b128 v[{F+12}:{F+15}], v8 offset:{ob+2560}")
        a(f"ds_read_b128 v[{F+16}:{F+19}], v8 offset:{ob+KT_ARR}")
        a(f"ds_read_b128 v[{F+20}:{F+23}], v8 offset:{ob+KT_ARR+2560}")

    issue(0, FR[0])
    for r in range(32):
        a(f"v_mov_b32 v{64+r}, 0")
    for dp in range(32):
        F = FR[dp % 2]
        if dp < 31:
            issue(dp + 1, FR[(dp + 1) % 2])
            a("s_waitcnt lgkmcnt(8)")
        else:
            a("s_waitcnt lgkmcnt(0)")
        A1, A2 = f"v[{F}:{F+3}]", f"v[{F+4}:{F+7}]"
        B0a, B1a, B0b, B1b = (f"v[{F+8+4*k}:{F+11+4*k}]" for k in range(4))
        c0, c1 = f"v[{ACC0}:{ACC0+15}]", f"v[{ACC1}:{ACC1+15}]"
        a(f"v_mfma_f32_32x32x16_bf16 {c1}, {A1}, {B1a}, {c1}")
        a(f"v_mfma_f32_32x32x16_bf16 {c0}, {A1}, {B0a}, {c0}")
        a(f"v_mfma_f32_32x32x16_bf16 {c1}, {A2}, {B0a}, {c1}")
        a(f"v_mfma_f32_32x32x16_bf16 {c0}, {A1}, {B0b}, {c0}")
        a(f"v_mfma_f32_32x32x16_bf16 {c1}, {A1}, {B1b}, {c1}")
        a(f"v_mfma_f32_32x32x16_bf16 {c1}, {A2}, {B0b}, {c1}")
    ts(a)
    a("s_barrier")
    a("s_lshl_b32 s17, s7, 12")
    a("v_lshlrev_b32 v9, 4, v1")
    a("v_add_u32 v4, s17, v9")
    a("s_xor_b32 s19, s17, 0x1000")
    a("v_add_u32 v5, s19, v9")
    a("s_cmp_eq_u32 s16, 0")
    a("s_cbranch_scc0 L_ssm_h1w")
    for q in range(4):
        a(f"ds_write_b128 v4, v[{ACC1+4*q}:{ACC1+4*q+3}] offset:{KT + 1024*q}")
    a("s_branch L_ssm_wdone")
    a.label("L_ssm_h1w")
    for q in range(4):
        a(f"ds_write_b128 v4, v[{ACC0+4*q}:{ACC0+4*q+3}] offset:{KT + 1024*q}")
    for r in range(16):
        a(f"v_mov_b32 v{ACC0+r}, v{ACC1+r}")
    a.label("L_ssm_wdone")
    a("s_waitcnt lgkmcnt(0)")
    a("s_barrier")
    ts(a)
    for q in range(4):
        a(f"ds_read_b128 v[{16+4*q}:{19+4*q}], v5 offset:{KT + 1024*q}")
    a("v_lshlrev_b32 v6, 6, v2")
    a("v_lshl_add_u32 v6, v3, 3, v6")
    a("s_lshl_b32 s19, s16, 11")
    a("s_mul_i32 s17, s15, %d" % U_CH)
    a("s_add_u32 s17, s17, s19")
    a("v_add_u32 v7, s17, v6")
    for q in range(4):
        a(f"ds_read_b64 v[{32+2*q}:{33+2*q}], v7 offset:{U0 + 64 + 16*q}")
    a("s_add_u32 s17, s3, s15")
    a("s_lshl_b32 s17, s17, 12")
    a("s_add_u32 s17, s17, s19")
    a(f"s_add_u32 s17, s17, {WS_AT}")
    a("v_add_u32 v8, s17, v6")
    a("s_waitcnt lgkmcnt(0)")
    for r in range(16):
        a(f"v_add_f32 v{ACC0+r}, v{ACC0+r}, v{16+r}")
    for q in range(4):
        a(f"v_cvt_pk_bf16_f32 v40, v{ACC0+4*q}, v{ACC0+4*q+1}")
        a(f"v_cvt_pk_bf16_f32 v41, v{ACC0+4*q+2}, v{ACC0+4*q+3}")
        a("v_lshlrev_b32 v42, 16, v40")
        a("v_and_b32 v43, 0xffff0000, v40")
        a("v_lshlrev_b32 v44, 16, v41")
        a("v_and_b32 v45, 0xffff0000, v41")
        a(f"v_lshlrev_b32 v46, 16, v{32+2*q}")
        a(f"v_and_b32 v47, 0xffff0000, v{32+2*q}")
        a(f"v_lshlrev_b32 v48, 16, v{33+2*q}")
        a(f"v_and_b32 v49, 0xffff0000, v{33+2*q}")
        for k in range(4):
            a(f"v_mul_f32 v{46+k}, s13, v{46+k}")
        a("v_cvt_pk_bf16_f32 v50, v46, v47")
        a("v_cvt_pk_bf16_f32 v51, v48, v49")
        a("v_lshlrev_b32 v46, 16, v50")
        a("v_and_b32 v47, 0xffff0000, v50")
        a("v_lshlrev_b32 v48, 16, v51")
        a("v_and_b32 v49, 0xffff0000, v51")
        for k in range(4):
            a(f"v_add_f32 v{42+k}, v{42+k}, v{46+k}")
        a(f"v_cvt_pk_bf16_f32 v{52+2*q}, v42, v43")
        a(f"v_cvt_pk_bf16_f32 v{53+2*q}, v44, v45")
        a(f"buffer_store_dwordx2 v[{52+2*q}:{53+2*q}], v8, s[{S_WS}:{S_WS+3}], 0 offen offset:{16*q}")
    ts(a)
    ts_dump(a, S_WS)
    a("s_endpgm")
```

```python
import struct
import sys
import os

sys.path.insert(0, os.path.dirname(os.path.abspath(__file__)))
from asmlib import Asm

NAME = "gated_mix__ssm_conv_s4d__geglu_ffn__prompt"


def f2h(x):
    return "0x%08x" % struct.unpack("<I", struct.pack("<f", x))[0]


L2E = 0x3FB8AA3B
L2E_LO = 0x32A57060
LN2 = 0x3F317218
INV2PI = 0x3E22F983

WS_H = 0
WS_AT = 0x600000
WS_G = 0x800000
WS_DBG = 0x900000

N_SSM = 256
N_G1 = 240
N_GATE = 16
N_K1 = N_SSM + N_G1 + N_GATE

U_CH = 8576
U_C1 = 4288
KT = 17152
KT_ARR = 7680
KD = 47872
PR = 56064
LDS_K1 = 81920

S_U, S_WS, S_A, S_B, S_C, S_D = 48, 52, 56, 60, 64, 68


def srd(a, dst, base, nbytes):
    a(f"s_mov_b32 s{dst}, s{base}")
    a(f"s_and_b32 s{dst+1}, s{base+1}, 0xffff")
    a(f"s_mov_b32 s{dst+2}, {nbytes}")
    a(f"s_mov_b32 s{dst+3}, 0x00020000")


def load_kernargs(a):
    a("s_load_dwordx16 s[16:31], s[0:1], 0")
    a("s_load_dwordx8 s[32:39], s[0:1], 64")
    a("s_load_dwordx4 s[40:43], s[0:1], 96")
    a("s_load_dwordx2 s[44:45], s[0:1], 112")


def exp_precise(a, dst, x, t0, t1):
    a(f"v_mul_f32 v{t0}, {hex(L2E)}, v{x}")
    a(f"s_mov_b32 s10, {hex(L2E)}")
    a(f"v_fma_f32 v{t1}, v{x}, s10, -v{t0}")
    a(f"v_fmac_f32 v{t1}, {hex(L2E_LO)}, v{x}")
    a(f"v_exp_f32 v{dst}, v{t0}")
    a(f"v_mul_f32 v{t1}, {hex(LN2)}, v{t1}")
    a(f"v_fmac_f32 v{dst}, v{dst}, v{t1}")


PROFK = os.environ.get("PROF", "0")
CURK = ["1"]
TS_N = [0]


def ts(a):
    if PROFK != CURK[0]:
        return
    i = TS_N[0]
    TS_N[0] += 1
    if i == 0:
        a("s_memrealtime s[76:77]")
    a(f"s_memtime s[{80+2*i}:{81+2*i}]")
    a("s_waitcnt lgkmcnt(0)")


def ts_dump(a, wsrd):
    if PROFK != CURK[0]:
        return
    n = TS_N[0]
    TS_N[0] = 0
    a("s_lshl_b32 s78, s2, 2")
    a("s_add_u32 s78, s78, s7")
    a("s_lshl_b32 s78, s78, 6")
    a(f"s_add_u32 s78, s78, {WS_DBG}")
    a("s_mov_b64 exec, 1")
    a("v_mov_b32 v1, s78")
    for i in range(n):
        a(f"v_mov_b32 v2, s{80+2*i}")
        a(f"buffer_store_dword v2, v1, s[{wsrd}:{wsrd+3}], 0 offen offset:{4*i}")
    a("v_mov_b32 v2, s76")
    a(f"buffer_store_dword v2, v1, s[{wsrd}:{wsrd+3}], 0 offen offset:56")
    a("s_memrealtime s[76:77]")
    a("s_waitcnt lgkmcnt(0)")
    a("v_mov_b32 v2, s76")
    a(f"buffer_store_dword v2, v1, s[{wsrd}:{wsrd+3}], 0 offen offset:60")
    a("s_waitcnt vmcnt(0)")


def bf16r(a, reg):
    a(f"v_cvt_pk_bf16_f32 v{reg}, v{reg}, v{reg}")
    a(f"v_lshlrev_b32 v{reg}, 16, v{reg}")


def gen_ssm(a):
    import ssm2
    ssm2.gen_ssm(a, sys.modules[__name__])


def gen_gemm1(a):
    import g1v2
    g1v2.gen_gemm1(a, sys.modules[__name__])


def gen_gate(a):
    import g1v2
    g1v2.gen_gate(a, sys.modules[__name__])


G2_R = int(os.environ.get('G2R', '4'))
G2_SLOT = 16384
LDS_K2 = G2_R * G2_SLOT


class VM:
    def __init__(self, a):
        self.a = a
        self.ops = []

    def issue(self, text, tag):
        self.a(text)
        self.ops.append(tag)

    def wait(self, tag):
        idx = max(i for i, t in enumerate(self.ops) if t == tag)
        n = len(self.ops) - 1 - idx
        assert n <= 63, n
        self.a(f"s_waitcnt vmcnt({n})")


def gen_k2(a):
    CURK[0] = "2"
    a("s_cmp_ge_u32 s2, 256")
    a("s_cbranch_scc1 L_k2_exit")
    ts(a)
    load_kernargs(a)
    a("s_and_b32 s4, s2, 7")
    a("s_lshl_b32 s4, s4, 2")
    a("s_bfe_u32 s5, s2, 0x20003")
    a("s_add_u32 s4, s4, s5")
    a("s_lshr_b32 s5, s2, 5")
    a("v_and_b32 v1, 63, v0")
    a("v_lshrrev_b32 v2, 6, v0")
    a("v_readfirstlane_b32 s7, v2")
    a("s_and_b32 s12, s7, 1")
    a("s_lshr_b32 s13, s7, 1")
    vm = VM(a)
    a("v_lshrrev_b32 v5, 5, v1")
    a("v_bfe_u32 v6, v1, 2, 2")
    a("v_lshl_add_u32 v5, v5, 2, v6")
    a("v_lshlrev_b32 v5, 10, v5")
    a("v_bfe_u32 v6, v1, 4, 1")
    a("v_lshl_add_u32 v5, v6, 6, v5")
    a("v_and_b32 v6, 3, v1")
    a("v_lshl_add_u32 v5, v6, 4, v5")
    a("s_mul_i32 s8, s13, 688")
    a("s_lshl_b32 s9, s12, 5")
    a("s_add_u32 s8, s8, s9")
    a("s_lshl_b32 s8, s8, 10")
    a("s_lshl_b32 s9, s5, 7")
    a("s_add_u32 s8, s8, s9")
    a("v_add_u32 v5, s8, v5")
    a("v_add_u32 v6, 0x2000, v5")
    a("v_add_u32 v7, 0x4000, v5")
    a("v_add_u32 v8, 0x6000, v5")
    a("s_lshl_b32 s14, s13, 13")
    a("s_lshl_b32 s9, s12, 12")
    a("s_add_u32 s14, s14, s9")
    a("s_lshl_b32 s8, s4, 1")
    a("s_add_u32 s8, s8, s12")
    a("s_mul_i32 s8, s8, 88064")
    a("s_mul_i32 s9, s13, 43*1024")
    a("s_add_u32 s8, s8, s9")
    a("v_lshlrev_b32 v4, 4, v1")
    a("v_add_u32 v4, s8, v4")
    a("v_and_b32 v2, 31, v1")
    a("v_lshrrev_b32 v3, 5, v1")
    a("s_lshl_b32 s8, s4, 6")
    a("s_lshl_b32 s9, s12, 5")
    a("s_add_u32 s15, s8, s9")
    a("s_lshl_b32 s9, s5, 6")
    a("s_lshl_b32 s10, s13, 5")
    a("s_add_u32 s9, s9, s10")
    a("v_lshlrev_b32 v9, 4, v3")
    a("s_lshl_b32 s10, s15, 2")
    a(f"s_add_u32 s10, s10, {WS_G}")
    a("v_add_u32 v9, s10, v9")
    a("v_add_u32 v10, s9, v2")
    a("v_lshlrev_b32 v11, 12, v10")
    a("v_lshl_add_u32 v11, v3, 3, v11")
    a("s_lshl_b32 s10, s15, 1")
    a(f"s_add_u32 s10, s10, {WS_AT}")
    a("v_add_u32 v11, s10, v11")
    a("v_lshrrev_b32 v12, 5, v1")
    a("v_lshlrev_b32 v12, 10, v12")
    a("v_bfe_u32 v13, v1, 2, 2")
    a("v_lshl_add_u32 v12, v13, 6, v12")
    a("v_bfe_u32 v13, v1, 4, 1")
    a("v_lshl_add_u32 v12, v13, 5, v12")
    a("v_and_b32 v13, 3, v1")
    a("v_lshl_add_u32 v12, v13, 3, v12")
    a("s_lshl_b32 s8, s13, 13")
    a("v_add_u32 v12, s8, v12")
    a("v_add_u32 v13, 0x10000, v12")
    a("s_waitcnt lgkmcnt(0)")
    srd(a, S_WS, 44, 0x10000000)
    srd(a, S_A, 36, 1376 * 1024)
    srd(a, S_B, 40, 2097152)

    ACC = 48
    WF = [80, 88]
    GA = 16
    AR = 96

    def nsteps(stage):
        return 4 if stage < 10 else 3

    def group(stage):
        slot = stage % G2_R
        for j in range(4):
            a(f"s_add_u32 m0, s14, {slot*G2_SLOT + j*1024}")
            a(f"s_mov_b32 s8, {stage*65536}")
            vm.issue(f"buffer_load_dwordx4 v{5+j}, s[{S_A}:{S_A+3}], s8 offen lds", ("st", stage))
        A = AR + 16 * slot
        a(f"s_mov_b32 s9, {stage*4096}")
        for t in range(nsteps(stage)):
            vm.issue(f"buffer_load_dwordx4 v[{A+4*t}:{A+4*t+3}], v4, s[{S_WS}:{S_WS+3}], s9 offen offset:{1024*t}", ("st", stage))

    def read_frags(slot, t, F):
        base = 12 if slot < 4 else 13
        for nb in range(2):
            for j in range(2):
                off = (slot % 4) * G2_SLOT + t * 2048 + j * 512 + nb * 256
                a(f"ds_read_b64_tr_b16 v[{F+4*nb+2*j}:{F+4*nb+2*j+1}], v{base} offset:{off}")

    for s in range(G2_R - 1):
        group(s)
    for r in range(32):
        a(f"v_mov_b32 v{ACC+r}, 0")
    for s in range(11):
        slot = s % G2_R
        A = AR + 16 * slot
        ns = nsteps(s)
        vm.wait(("st", s))
        a("s_barrier")
        if s in (0, 1, 2, 4, 6, 8, 10):
            ts(a)
        if s - 1 + G2_R < 11:
            group(s - 1 + G2_R)
        if s == 4:
            for q in range(4):
                vm.issue(f"buffer_load_dwordx4 v[{GA+4*q}:{GA+4*q+3}], v9, s[{S_WS}:{S_WS+3}], 0 offen offset:{32*q}", "ga")
            for q in range(4):
                vm.issue(f"buffer_load_dwordx2 v[{GA+16+2*q}:{GA+17+2*q}], v11, s[{S_WS}:{S_WS+3}], 0 offen offset:{16*q}", "ga")
        read_frags(slot, 0, WF[0])
        for t in range(ns):
            F = WF[t % 2]
            if t < ns - 1:
                read_frags(slot, t + 1, WF[(t + 1) % 2])
                a("s_waitcnt lgkmcnt(4)")
            else:
                a("s_waitcnt lgkmcnt(0)")
            for nb in range(2):
                c = f"v[{ACC+16*nb}:{ACC+16*nb+15}]"
                a(f"v_mfma_f32_32x32x16_bf16 {c}, v[{A+4*t}:{A+4*t+3}], v[{F+4*nb}:{F+4*nb+3}], {c}")
    a("s_barrier")
    ts(a)
    a("s_lshl_b32 s10, s7, 12")
    a("v_lshlrev_b32 v4, 4, v1")
    a("v_add_u32 v5, s10, v4")
    a("s_xor_b32 s11, s10, 0x2000")
    a("v_add_u32 v6, s11, v4")
    a("s_cmp_eq_u32 s13, 0")
    a("s_cbranch_scc0 L_k2_w1")
    for q in range(4):
        a(f"ds_write_b128 v5, v[{ACC+16+4*q}:{ACC+19+4*q}] offset:{1024*q}")
    a("s_branch L_k2_wd")
    a.label("L_k2_w1")
    for q in range(4):
        a(f"ds_write_b128 v5, v[{ACC+4*q}:{ACC+3+4*q}] offset:{1024*q}")
    for r in range(16):
        a(f"v_mov_b32 v{ACC+r}, v{ACC+16+r}")
    a.label("L_k2_wd")
    a("s_waitcnt lgkmcnt(0)")
    a("s_barrier")
    X = 96
    for q in range(4):
        a(f"ds_read_b128 v[{X+4*q}:{X+3+4*q}], v6 offset:{1024*q}")
    a("v_lshlrev_b32 v8, 12, v3")
    a("v_lshl_add_u32 v8, v10, 1, v8")
    a("s_lshl_b32 s10, s15, 10")
    a("v_add_u32 v8, s10, v8")
    a("v_add_u32 v12, 0x2000, v8")
    a("v_add_u32 v13, 0x4000, v8")
    a("v_add_u32 v14, 0x6000, v8")
    a("s_waitcnt vmcnt(0) lgkmcnt(0)")
    T = 112
    for q in range(4):
        addr = (8, 12, 13, 14)[q]
        for p in range(2):
            r = 4 * q + 2 * p
            g0, g1 = GA + r, GA + r + 1
            aa = GA + 16 + 2 * q + p
            a(f"""
            v_add_f32 v{T}, v{ACC+r}, v{X+r}
            v_add_f32 v{T+1}, v{ACC+r+1}, v{X+r+1}
            v_cvt_pk_bf16_f32 v{T}, v{T}, v{T+1}
            v_lshlrev_b32 v{T+1}, 16, v{T}
            v_and_b32 v{T}, 0xffff0000, v{T}
            v_lshlrev_b32 v{T+2}, 16, v{aa}
            v_and_b32 v{T+3}, 0xffff0000, v{aa}
            v_mul_f32 v{T+2}, v{g0}, v{T+2}
            v_mul_f32 v{T+3}, v{g1}, v{T+3}
            v_sub_f32 v{T+4}, 1.0, v{g0}
            v_sub_f32 v{T+5}, 1.0, v{g1}
            v_cvt_pk_bf16_f32 v{T+2}, v{T+2}, v{T+3}
            v_cvt_pk_bf16_f32 v{T+4}, v{T+4}, v{T+5}
            v_lshlrev_b32 v{T+5}, 16, v{T+4}
            v_and_b32 v{T+4}, 0xffff0000, v{T+4}
            v_mul_f32 v{T+5}, v{T+5}, v{T+1}
            v_mul_f32 v{T+4}, v{T+4}, v{T}
            v_cvt_pk_bf16_f32 v{T+4}, v{T+5}, v{T+4}
            v_lshlrev_b32 v{T+3}, 16, v{T+2}
            v_and_b32 v{T+2}, 0xffff0000, v{T+2}
            v_lshlrev_b32 v{T+5}, 16, v{T+4}
            v_and_b32 v{T+4}, 0xffff0000, v{T+4}
            v_add_f32 v{T+3}, v{T+3}, v{T+5}
            v_add_f32 v{T+2}, v{T+2}, v{T+4}
            v_cvt_pk_bf16_f32 v{T+6+p}, v{T+3}, v{T+2}
            buffer_store_short v{T+6+p}, v{addr}, s[{S_B}:{S_B+3}], 0 offen offset:{1024*(2*p)}
            buffer_store_short_d16_hi v{T+6+p}, v{addr}, s[{S_B}:{S_B+3}], 0 offen offset:{1024*(2*p+1)}
            """)
    a("s_waitcnt vmcnt(0)") if PROFK == "2" else None
    ts(a)
    ts_dump(a, S_WS)
    a.label("L_k2_exit")
    a("s_endpgm")


HEADER = open(os.path.join(os.path.dirname(os.path.abspath(__file__)), "..", "cdna_kernels", NAME + ".s.ref")).read()


def kd(name, vgpr, sgpr):
    acc = (vgpr + 3) // 4 * 4
    return f""".amdhsa_kernel {name}
  .amdhsa_next_free_vgpr {vgpr}
  .amdhsa_next_free_sgpr {sgpr}
  .amdhsa_accum_offset {acc}
  .amdhsa_group_segment_fixed_size 0
  .amdhsa_kernarg_size 120
  .amdhsa_user_sgpr_count 2
  .amdhsa_user_sgpr_kernarg_segment_ptr 1
  .amdhsa_system_sgpr_workgroup_id_x 1
.end_amdhsa_kernel
"""


def main():
    head = [l for l in HEADER.splitlines() if l.startswith(";") and "@launch" not in l]
    out = list(head)
    k1 = NAME + "_kernel"
    k2 = "gm_stage2_kernel"
    out.append(f"; @launch kernel={k1} grid=({N_K1},1,1) block=(256,1,1) lds={LDS_K1}")
    out.append(f"; @launch kernel={k2} grid=(256,1,1) block=(256,1,1) lds={LDS_K2}")
    out.append('.amdgcn_target "amdgcn-amd-amdhsa--gfx950"')
    out.append(".text")

    a = Asm()
    a(f"s_cmp_ge_u32 s2, {N_K1}")
    a("s_cbranch_scc1 L_k1_exit")
    load_kernargs(a)
    a("s_mov_b32 s74, 0x7fff")
    skip = os.environ.get("SKIP", "").split(",")
    a(f"s_cmp_ge_u32 s2, {N_SSM + N_G1}")
    a("s_cbranch_scc1 " + ("L_k1_exit" if "gate" in skip else "L_gate"))
    a(f"s_cmp_ge_u32 s2, {N_SSM}")
    a("s_cbranch_scc1 " + ("L_k1_exit" if "gemm1" in skip else "L_gemm1"))
    if "ssm" in skip:
        a("s_branch L_k1_exit")
    gen_ssm(a)
    a.label("L_gemm1")
    gen_gemm1(a)
    a.label("L_gate")
    gen_gate(a)
    a.label("L_k1_exit")
    a("s_endpgm")
    body1 = a.text()
    v1, s1 = a.maxv + 1, max(a.maxs, 74) + 1

    b = Asm()
    gen_k2(b)
    v2, s2 = b.maxv + 1, max(b.maxs, 78) + 1

    for nm, body in ((k1, body1), (k2, b.text())):
        out.append(f".globl {nm}")
        out.append(".p2align 8")
        out.append(f".type {nm},@function")
        out.append(f"{nm}:")
        out.append(body)
    out.append('.section .rodata,"a"')
    out.append(".p2align 6")
    out.append(kd(k1, v1, s1))
    out.append(".p2align 6")
    out.append(kd(k2, v2, s2))
    path = os.environ.get("OUT") or os.path.join(os.path.dirname(os.path.abspath(__file__)), "..", "cdna_kernels", NAME + ".s")
    open(path, "w").write("\n".join(out))
    print("wrote", path, "vgpr", v1, v2, "sgpr", s1, s2)


if __name__ == "__main__":
    main()
```

```python
import sys, os
sys.path.insert(0, "gen")
NAME = "gated_mix__ssm_conv_s4d__geglu_ffn__prompt"
HEADER = open("cdna_kernels/" + NAME + ".s.ref").read()
def gen(path, mf, va, agpr=False, shape=32, prio=None, trans=False, dep=False):
    o = [l for l in HEADER.splitlines() if l.startswith(";") and "@launch" not in l]
    k = NAME + "_kernel"
    o.append(f"; @launch kernel={k} grid=(256,1,1) block=(512,1,1) lds=1024")
    o.append('.amdgcn_target "amdgcn-amd-amdhsa--gfx950"')
    o.append(".text"); o.append(f".globl {k}"); o.append(".p2align 8"); o.append(f".type {k},@function"); o.append(f"{k}:")
    A = o.append
    A("s_cmp_ge_u32 s2, 256"); A("s_cbranch_scc1 L_exit")
    A("s_load_dwordx2 s[44:45], s[0:1], 112")
    A("v_lshrrev_b32 v2, 6, v0"); A("s_nop 1"); A("v_readfirstlane_b32 s7, v2")
    for r in range(8, 100): A(f"v_mov_b32 v{r}, 0")
    if agpr:
        for r in range(64): A(f"v_accvgpr_write_b32 a{r}, 0")
    A("s_waitcnt lgkmcnt(0)")
    A("s_mov_b32 s52, s44"); A("s_and_b32 s53, s45, 0xffff"); A("s_mov_b32 s54, 0x10000000"); A("s_mov_b32 s55, 0x00020000")
    A("s_barrier")
    A("s_memtime s[80:81]"); A("s_waitcnt lgkmcnt(0)")
    A("s_cmp_ge_u32 s7, 4"); A("s_cbranch_scc1 L_valu")
    if prio == "m": A("s_setprio 3")
    if mf:
        A("s_mov_b32 s10, 50"); A("L_m:")
        for i in range(8):
            if shape == 32:
                c = (f"a[{16*(i%4)}:{16*(i%4)+15}]" if agpr else f"v[{32+16*(i%4)}:{47+16*(i%4)}]")
                A(f"v_mfma_f32_32x32x16_bf16 {c}, v[8:11], v[12:15], {c}")
            else:
                for h in range(2):
                    j = (2 * i + h) % 8
                    c = (f"a[{4*j}:{4*j+3}]" if agpr else f"v[{32+4*j}:{35+4*j}]")
                    A(f"v_mfma_f32_16x16x32_bf16 {c}, v[8:11], v[12:15], {c}")
        A("s_sub_u32 s10, s10, 1"); A("s_cmp_lg_u32 s10, 0"); A("s_cbranch_scc1 L_m")
    A("s_branch L_done")
    A("L_valu:")
    if prio == "v": A("s_setprio 3")
    if va:
        A("s_mov_b32 s10, 50"); A("L_v:")
        for i in range(64):
            if trans and i % 4 == 0:
                A(f"v_exp_f32 v{16+i%8}, v{24+i%8}")
            else:
                A(f"v_fma_f32 v{16+i%8}, v{24+(i%8)}, v{24+((i+1)%8)}, v{16+i%8}")
        A("s_sub_u32 s10, s10, 1"); A("s_cmp_lg_u32 s10, 0"); A("s_cbranch_scc1 L_v")
    A("L_done:")
    A("s_nop 7"); A("s_nop 7")
    A("s_memtime s[82:83]"); A("s_waitcnt lgkmcnt(0)")
    A("s_lshl_b32 s78, s2, 3"); A("s_add_u32 s78, s78, s7"); A("s_lshl_b32 s78, s78, 6"); A(f"s_add_u32 s78, s78, {0x900000}")
    A("s_mov_b64 exec, 1"); A("v_mov_b32 v1, s78"); A("v_mov_b32 v2, s80"); A("v_mov_b32 v3, s82")
    A("buffer_store_dwordx2 v[2:3], v1, s[52:55], 0 offen"); A("s_waitcnt vmcnt(0)")
    A("L_exit:"); A("s_endpgm")
    A('.section .rodata,"a"'); A(".p2align 6")
    nv = 192 if agpr else 100
    A(f""".amdhsa_kernel {k}
  .amdhsa_next_free_vgpr {nv}
  .amdhsa_next_free_sgpr 90
  .amdhsa_accum_offset {128 if agpr else 100}
  .amdhsa_group_segment_fixed_size 0
  .amdhsa_kernarg_size 120
  .amdhsa_user_sgpr_count 2
  .amdhsa_user_sgpr_kernarg_segment_ptr 1
  .amdhsa_system_sgpr_workgroup_id_x 1
.end_amdhsa_kernel""")
    open(path, "w").write("\n".join(o) + "\n")
gen("m0.s", 1, 0)
gen("m1.s", 0, 1)
gen("m2.s", 1, 1)
gen("m3.s", 1, 1, agpr=True)
gen("m4.s", 1, 1, shape=16)
gen("m5.s", 1, 1, prio="v")
gen("m6.s", 1, 1, prio="m")
gen("m7.s", 0, 1, trans=True)
gen("m8.s", 1, 1, trans=True)
gen("m9.s", 1, 0, shape=16)
```

```python
import sys, os
NAME = "gated_mix__ssm_conv_s4d__geglu_ffn__prompt"
HEADER = open("cdna_kernels/" + NAME + ".s.ref").read()
def gen(path, n, kind="fma", grid=512):
    o = [l for l in HEADER.splitlines() if l.startswith(";") and "@launch" not in l]
    k = NAME + "_kernel"
    o.append(f"; @launch kernel={k} grid=({grid},1,1) block=(256,1,1) lds=81920")
    o.append('.amdgcn_target "amdgcn-amd-amdhsa--gfx950"')
    o.append(".text"); o.append(f".globl {k}"); o.append(".p2align 8"); o.append(f".type {k},@function"); o.append(f"{k}:")
    A = o.append
    A(f"s_cmp_ge_u32 s2, {grid}"); A("s_cbranch_scc1 L_exit")
    A("s_load_dwordx2 s[44:45], s[0:1], 112")
    A("v_lshrrev_b32 v2, 6, v0"); A("s_nop 1"); A("v_readfirstlane_b32 s7, v2")
    for r in range(8, 100): A(f"v_mov_b32 v{r}, 0")
    A("s_waitcnt lgkmcnt(0)")
    A("s_mov_b32 s52, s44"); A("s_and_b32 s53, s45, 0xffff"); A("s_mov_b32 s54, 0x10000000"); A("s_mov_b32 s55, 0x00020000")
    A("s_mov_b32 s10, 0")
    A("s_memtime s[80:81]"); A("s_waitcnt lgkmcnt(0)")
    A("L_loop:")
    for i in range(n):
        if kind == "fma":
            A(f"v_fma_f32 v{16+i%8}, v{24+(i%8)}, v{24+((i+1)%8)}, v{16+i%8}")
        elif kind == "mf":
            if i % 8 == 0:
                c = f"v[{32+16*((i//8)%4)}:{47+16*((i//8)%4)}]"
                A(f"v_mfma_f32_32x32x16_bf16 {c}, v[8:11], v[12:15], {c}")
            else:
                A(f"s_mov_b32 s20, 0x12345678")
    A("s_memtime s[90:91]"); A("s_waitcnt lgkmcnt(0)")
    A("s_cmp_eq_u32 s10, 0"); A("s_cselect_b32 s82, s90, s82")
    A("s_cmp_eq_u32 s10, 1"); A("s_cselect_b32 s84, s90, s84")
    A("s_cmp_eq_u32 s10, 2"); A("s_cselect_b32 s86, s90, s86")
    A("s_add_u32 s10, s10, 1"); A("s_cmp_lt_u32 s10, 3"); A("s_cbranch_scc1 L_loop")
    A("s_lshl_b32 s78, s2, 2"); A("s_add_u32 s78, s78, s7"); A("s_lshl_b32 s78, s78, 6"); A(f"s_add_u32 s78, s78, {0x900000}")
    A("s_mov_b64 exec, 1"); A("v_mov_b32 v1, s78"); A("v_mov_b32 v2, s80"); A("v_mov_b32 v3, s82"); A("v_mov_b32 v4, s84"); A("v_mov_b32 v5, s86")
    A("buffer_store_dwordx4 v[2:5], v1, s[52:55], 0 offen"); A("s_waitcnt vmcnt(0)")
    A("L_exit:"); A("s_endpgm")
    A('.section .rodata,"a"'); A(".p2align 6")
    A(f""".amdhsa_kernel {k}
  .amdhsa_next_free_vgpr 100
  .amdhsa_next_free_sgpr 96
  .amdhsa_accum_offset 100
  .amdhsa_group_segment_fixed_size 0
  .amdhsa_kernarg_size 120
  .amdhsa_user_sgpr_count 2
  .amdhsa_user_sgpr_kernarg_segment_ptr 1
  .amdhsa_system_sgpr_workgroup_id_x 1
.end_amdhsa_kernel""")
    open(path, "w").write("\n".join(o) + "\n")
gen("i0.s", 2048, "fma", 512)
gen("i1.s", 2048, "mf", 512)
gen("i2.s", 2048, "fma", 256)
```

```python
import sys, os
NAME = "gated_mix__ssm_conv_s4d__geglu_ffn__prompt"
HEADER = open("cdna_kernels/" + NAME + ".s.ref").read()
def valu(kind, i):
    d = 16 + 2 * (i % 4)
    s0 = 24 + 2 * (i % 4); s1 = 24 + 2 * ((i + 1) % 4)
    if kind == "fma": return f"v_fma_f32 v{d}, v{s0}, v{s1}, v{d}"
    if kind == "pkfma": return f"v_pk_fma_f32 v[{d}:{d+1}], v[{s0}:{s0+1}], v[{s1}:{s1+1}], v[{d}:{d+1}]"
    if kind == "pkmul": return f"v_pk_mul_f32 v[{d}:{d+1}], v[{s0}:{s0+1}], v[{s1}:{s1+1}]"
    if kind == "cvt": return f"v_cvt_pk_bf16_f32 v{d}, v{s0}, v{s1}"
    if kind == "int": return f"v_lshlrev_b32 v{d}, 16, v{s0}"
    if kind == "exp": return f"v_exp_f32 v{d}, v{s0}"
    if kind == "dep": return f"v_fma_f32 v16, v16, v{s1}, v16"
    if kind == "pkdep": return f"v_pk_fma_f32 v[16:17], v[16:17], v[{s1}:{s1+1}], v[16:17]"
def gen(path, mf, kind, prio=None):
    o = [l for l in HEADER.splitlines() if l.startswith(";") and "@launch" not in l]
    k = NAME + "_kernel"
    o.append(f"; @launch kernel={k} grid=(256,1,1) block=(512,1,1) lds=1024")
    o.append('.amdgcn_target "amdgcn-amd-amdhsa--gfx950"')
    o.append(".text"); o.append(f".globl {k}"); o.append(".p2align 8"); o.append(f".type {k},@function"); o.append(f"{k}:")
    A = o.append
    A("s_cmp_ge_u32 s2, 256"); A("s_cbranch_scc1 L_exit")
    A("s_load_dwordx2 s[44:45], s[0:1], 112")
    A("v_lshrrev_b32 v2, 6, v0"); A("s_nop 1"); A("v_readfirstlane_b32 s7, v2")
    for r in range(8, 100): A(f"v_mov_b32 v{r}, 0")
    A("s_waitcnt lgkmcnt(0)")
    A("s_mov_b32 s52, s44"); A("s_and_b32 s53, s45, 0xffff"); A("s_mov_b32 s54, 0x10000000"); A("s_mov_b32 s55, 0x00020000")
    A("s_barrier")
    A("s_memtime s[80:81]"); A("s_waitcnt lgkmcnt(0)")
    A("s_cmp_ge_u32 s7, 4"); A("s_cbranch_scc1 L_valu")
    if mf:
        A("s_mov_b32 s10, 100"); A("L_m:")
        for i in range(8):
            c = f"v[{32+16*(i%4)}:{47+16*(i%4)}]"
            A(f"v_mfma_f32_32x32x16_bf16 {c}, v[8:11], v[12:15], {c}")
        A("s_sub_u32 s10, s10, 1"); A("s_cmp_lg_u32 s10, 0"); A("s_cbranch_scc1 L_m")
    A("s_branch L_done")
    A("L_valu:")
    if prio: A("s_setprio 3")
    A("s_mov_b32 s10, 32"); A("L_v:")
    for i in range(64): A(valu(kind, i))
    A("s_sub_u32 s10, s10, 1"); A("s_cmp_lg_u32 s10, 0"); A("s_cbranch_scc1 L_v")
    A("L_done:")
    A("s_nop 7"); A("s_nop 7")
    A("s_memtime s[82:83]"); A("s_waitcnt lgkmcnt(0)")
    A("s_lshl_b32 s78, s2, 3"); A("s_add_u32 s78, s78, s7"); A("s_lshl_b32 s78, s78, 6"); A(f"s_add_u32 s78, s78, {0x900000}")
    A("s_mov_b64 exec, 1"); A("v_mov_b32 v1, s78"); A("v_mov_b32 v2, s80"); A("v_mov_b32 v3, s82")
    A("buffer_store_dwordx2 v[2:3], v1, s[52:55], 0 offen"); A("s_waitcnt vmcnt(0)")
    A("L_exit:"); A("s_endpgm")
    A('.section .rodata,"a"'); A(".p2align 6")
    A(f""".amdhsa_kernel {k}
  .amdhsa_next_free_vgpr 100
  .amdhsa_next_free_sgpr 90
  .amdhsa_accum_offset 100
  .amdhsa_group_segment_fixed_size 0
  .amdhsa_kernarg_size 120
  .amdhsa_user_sgpr_count 2
  .amdhsa_user_sgpr_kernarg_segment_ptr 1
  .amdhsa_system_sgpr_workgroup_id_x 1
.end_amdhsa_kernel""")
    open(path, "w").write("\n".join(o) + "\n")
names = []
for kind in ("fma", "pkfma", "pkmul", "cvt", "int", "exp", "dep", "pkdep"):
    for mf in (0, 1):
        p = f"mb/n_{kind}_{mf}.s"; gen("code/" + p, mf, kind); names.append(p)
print(" ".join(names))
import json; print(json.dumps(names))
```

```python
import sys, os
NAME = "gated_mix__ssm_conv_s4d__geglu_ffn__prompt"
HEADER = open("cdna_kernels/" + NAME + ".s.ref").read()
def valu(kind, i):
    d = 16 + 2 * (i % 4)
    s0 = 24 + 2 * (i % 4); s1 = 24 + 2 * ((i + 1) % 4)
    if kind == "fma": return f"v_fma_f32 v{d}, v{s0}, v{s1}, v{d}"
    if kind == "pkfma": return f"v_pk_fma_f32 v[{d}:{d+1}], v[{s0}:{s0+1}], v[{s1}:{s1+1}], v[{d}:{d+1}]"
    if kind == "pkmul": return f"v_pk_mul_f32 v[{d}:{d+1}], v[{s0}:{s0+1}], v[{s1}:{s1+1}]"
    if kind == "cvt": return f"v_cvt_pk_bf16_f32 v{d}, v{s0}, v{s1}"
    if kind == "int": return f"v_lshlrev_b32 v{d}, 16, v{s0}"
    if kind == "exp": return f"v_exp_f32 v{d}, v{s0}"
    if kind == "dot2": return f"v_dot2_f32_bf16 v{d}, v{s0}, v{s1}, v{d}"
    if kind == "mix": return f"v_fma_mix_f32 v{d}, v{s0}, v{s1}, v{d} op_sel_hi:[1,0,0]"
    if kind == "perm": return f"v_perm_b32 v{d}, v{s0}, v{s1}, v{d}"
    if kind == "sin": return f"v_sin_f32 v{d}, v{s0}"
    if kind == "mul": return f"v_mul_f32 v{d}, v{s0}, v{s1}"
    if kind == "dep": return f"v_fma_f32 v16, v16, v{s1}, v16"
    if kind == "pkdep": return f"v_pk_fma_f32 v[16:17], v[16:17], v[{s1}:{s1+1}], v[16:17]"
def gen(path, mf, kind, prio=None):
    o = [l for l in HEADER.splitlines() if l.startswith(";") and "@launch" not in l]
    k = NAME + "_kernel"
    o.append(f"; @launch kernel={k} grid=(256,1,1) block=(512,1,1) lds=1024")
    o.append('.amdgcn_target "amdgcn-amd-amdhsa--gfx950"')
    o.append(".text"); o.append(f".globl {k}"); o.append(".p2align 8"); o.append(f".type {k},@function"); o.append(f"{k}:")
    A = o.append
    A("s_cmp_ge_u32 s2, 256"); A("s_cbranch_scc1 L_exit")
    A("s_load_dwordx2 s[44:45], s[0:1], 112")
    A("v_lshrrev_b32 v2, 6, v0"); A("s_nop 1"); A("v_readfirstlane_b32 s7, v2")
    for r in range(8, 100): A(f"v_mov_b32 v{r}, 0")
    A("s_waitcnt lgkmcnt(0)")
    A("s_mov_b32 s52, s44"); A("s_and_b32 s53, s45, 0xffff"); A("s_mov_b32 s54, 0x10000000"); A("s_mov_b32 s55, 0x00020000")
    A("s_barrier")
    A("s_memtime s[80:81]"); A("s_waitcnt lgkmcnt(0)")
    A("s_cmp_ge_u32 s7, 4"); A("s_cbranch_scc1 L_valu")
    if mf:
        A("s_mov_b32 s10, 100"); A("L_m:")
        for i in range(8):
            c = f"v[{32+16*(i%4)}:{47+16*(i%4)}]"
            A(f"v_mfma_f32_32x32x16_bf16 {c}, v[8:11], v[12:15], {c}")
        A("s_sub_u32 s10, s10, 1"); A("s_cmp_lg_u32 s10, 0"); A("s_cbranch_scc1 L_m")
    A("s_branch L_done")
    A("L_valu:")
    if prio: A("s_setprio 3")
    A("s_mov_b32 s10, 32"); A("L_v:")
    for i in range(64): A(valu(kind, i))
    A("s_sub_u32 s10, s10, 1"); A("s_cmp_lg_u32 s10, 0"); A("s_cbranch_scc1 L_v")
    A("L_done:")
    A("s_nop 7"); A("s_nop 7")
    A("s_memtime s[82:83]"); A("s_waitcnt lgkmcnt(0)")
    A("s_lshl_b32 s78, s2, 3"); A("s_add_u32 s78, s78, s7"); A("s_lshl_b32 s78, s78, 6"); A(f"s_add_u32 s78, s78, {0x900000}")
    A("s_mov_b64 exec, 1"); A("v_mov_b32 v1, s78"); A("v_mov_b32 v2, s80"); A("v_mov_b32 v3, s82")
    A("buffer_store_dwordx2 v[2:3], v1, s[52:55], 0 offen"); A("s_waitcnt vmcnt(0)")
    A("L_exit:"); A("s_endpgm")
    A('.section .rodata,"a"'); A(".p2align 6")
    A(f""".amdhsa_kernel {k}
  .amdhsa_next_free_vgpr 100
  .amdhsa_next_free_sgpr 90
  .amdhsa_accum_offset 100
  .amdhsa_group_segment_fixed_size 0
  .amdhsa_kernarg_size 120
  .amdhsa_user_sgpr_count 2
  .amdhsa_user_sgpr_kernarg_segment_ptr 1
  .amdhsa_system_sgpr_workgroup_id_x 1
.end_amdhsa_kernel""")
    open(path, "w").write("\n".join(o) + "\n")
names = []
for kind in sys.argv[1:]:
    for mf in (0, 1):
        p = f"mb/n_{kind}_{mf}.s"; gen("code/" + p, mf, kind); names.append(p)
print(" ".join(names))
import json; print(json.dumps(names))
```
